```python
import torch

def _softmax(x, axis=-1):
    return torch.softmax(x, dim=axis)

def _gelu(x):
    return torch.nn.functional.gelu(x, approximate='tanh')

def _silu(x):
    return torch.nn.functional.silu(x)

def _sigmoid(x):
    return torch.sigmoid(x)

def _layernorm(x, axis=-1, eps=1e-05):
    m = x.mean(dim=axis, keepdim=True)
    v = x.var(dim=axis, keepdim=True, unbiased=False)
    return (x - m) / torch.sqrt(v + eps)

def _scatter_add(tgt, idx, src, axis=0):
    return tgt.clone().index_add_(axis, idx, src)

def _segment_sum(src, seg, n):
    out = torch.zeros((n,) + src.shape[1:], dtype=src.dtype)
    return out.index_add_(0, seg, src)

def _pad(x, pw):
    flat = tuple((v for pair in reversed(pw) for v in pair))
    return torch.nn.functional.pad(x, flat)
kernel_name = 'adaLN_cond__ssm_conv_s4d__dense_activation_relu__prompt'

def setup_inputs():

    _w = lambda a: (lambda t: t.to(torch.bfloat16) if t.is_floating_point() else t)(torch.as_tensor(a))

    def _A_setup():
        Bsz, L, D, N = (1, 2048, 576, 128)
        return {'u': _w((lambda *s: torch.randn(*s, dtype=torch.bfloat16) * 0.05)(Bsz, L, D)), 'log_A_real': _w((lambda *s: torch.randn(*s, dtype=torch.bfloat16) * 3.2)(D, N) * 0.5), 'A_imag': _w((lambda *s: torch.randn(*s, dtype=torch.bfloat16) * 0.1)(D, N) * 3.14), 'C_real': _w((lambda *s: torch.randn(*s, dtype=torch.bfloat16) * 0.8)(D, N) / N ** 0.5), 'C_imag': _w((lambda *s: torch.randn(*s, dtype=torch.bfloat16) * 0.8)(D, N) / N ** 0.5), 'log_dt': _w((lambda *s: torch.randn(*s, dtype=torch.bfloat16) * 0.1)(D) * 0.5 - 4.0), 'D_skip': _w((lambda *s: torch.randn(*s, dtype=torch.bfloat16) * 0.1)(D))}
    _A_in = _A_setup()

    def _B_setup():
        B, S, D, Dff = (1, 2048, 576, 4608)
        return {'x': _w((lambda *s: torch.randn(*s, dtype=torch.bfloat16) * 0.05)(B, S, D)), 'w1': _w((lambda *s: torch.randn(*s, dtype=torch.bfloat16) * 0.05)(D, Dff)), 'w2': _w((lambda *s: torch.randn(*s, dtype=torch.bfloat16) * 0.05)(Dff, D))}
    _B_in = _B_setup()
    return {'A_u': _A_in['u'], 'A_log_A_real': _A_in['log_A_real'], 'A_A_imag': _A_in['A_imag'], 'A_C_real': _A_in['C_real'], 'A_C_imag': _A_in['C_imag'], 'A_log_dt': _A_in['log_dt'], 'A_D_skip': _A_in['D_skip'], 'B_x': _B_in['x'], 'B_w1': _B_in['w1'], 'B_w2': _B_in['w2'], 'c': _w((lambda *s: torch.randn(*s, dtype=torch.bfloat16) * 0.2)(1, 576) * 8.0), 'w_mod': _w((lambda *s: torch.randn(*s, dtype=torch.bfloat16) * 0.2)(576, 6 * 576) * 576 ** (-0.5) * 8.0)}

def reference(A_u, A_log_A_real, A_A_imag, A_C_real, A_C_imag, A_log_dt, A_D_skip, B_x, B_w1, B_w2, c, w_mod):

    def _A_ref(u, log_A_real, A_imag, C_real, C_imag, log_dt, D_skip):
        L = u.shape[1]
        dt = torch.exp(log_dt)
        A = -torch.exp(log_A_real) + 1j * A_imag
        C = (C_real + 1j * C_imag) * dt[:, None]
        pos = (lambda x, dt: x.to(dt))(torch.arange(L), log_dt.dtype)
        P = torch.exp((A * dt[:, None])[:, :, None] * pos[None, None, :])
        K = 2.0 * torch.einsum('dn,dnl->dl', C, P).real
        L2 = 2 * L
        u_t = (lambda x, *d: x.permute(*d))(u, 0, 2, 1)
        Kf = (lambda x, *a, **k: torch.fft.rfft(x.float(), *a, **k))(K, L2)
        Uf = (lambda x, *a, **k: torch.fft.rfft(x.float(), *a, **k))(u_t, L2)
        y = (lambda x, *a, **k: torch.fft.irfft(x, *a, **k).to(torch.bfloat16))(Uf * Kf[None, :, :], L2)[:, :, :L]
        y = (lambda x, *d: x.permute(*d))(y, 0, 2, 1)
        return y + u * D_skip[None, None, :]

    def _B_ref(x, w1, w2):
        h = torch.einsum('bsd,df->bsf', x, w1)
        zero = torch.zeros_like(h)
        h = torch.maximum(h, zero)
        return torch.einsum('bsf,fd->bsd', h, w2)
    x = A_u
    mod = (_silu(c) @ w_mod).reshape(c.shape[0], 6, 1, -1)
    sa, ca, ga, sb, cb, gb = (mod[:, 0].clone(), mod[:, 1].clone(), mod[:, 2].clone(), mod[:, 3].clone(), mod[:, 4].clone(), mod[:, 5].clone())
    h = _layernorm(x, axis=-1) * (1 + ca) + sa
    x = x + ga * _A_ref(h, A_log_A_real, A_A_imag, A_C_real, A_C_imag, A_log_dt, A_D_skip)
    h = _layernorm(x, axis=-1) * (1 + cb) + sb
    x = x + gb * _B_ref(h, B_w1, B_w2)
    return x
```

```python
L, D, NST, F = 2048, 576, 128, 4608
KA = dict(u=0, lar=8, aim=16, cre=24, cim=32, ldt=40, dsk=48, bx=56, w1=64, w2=72, c=80, wmod=88, out=96, dbg=104, ws=112)
WS_NX   = 0x0000000
WS_KT   = 0x0480000
WS_MODP = 0x06E0000
WS_GB   = 0x0700000
WS_RS   = 0x0701000
WS_X1T  = 0x0740000
WS_X1R  = 0x0980000
WS_W    = 0x0BC0000
WS_PART = 0x1640000
WS_STAMP = 0x3000000
WS_SIZE = 0x10000000
NFR = 333
KTP = 4224

class Asm:
    def __init__(self):
        self.l = []
    def __call__(self, s):
        for x in s.split("\n"):
            x = x.strip()
            if x: self.l.append(("" if x.endswith(":") else "    ") + x)
    def text(self): return "\n".join(self.l) + "\n"

def kernel(name, body, vgpr, agpr=0, sgpr=102):
    acc = (vgpr + 3) // 4 * 4
    nfv = acc + agpr if agpr else vgpr
    return f""".text
.globl {name}
.p2align 8
.type {name},@function
{name}:
{body}    s_endpgm
.section .rodata,"a"
.p2align 6
.amdhsa_kernel {name}
  .amdhsa_next_free_vgpr {nfv}
  .amdhsa_next_free_sgpr {sgpr}
  .amdhsa_accum_offset {acc}
  .amdhsa_group_segment_fixed_size 0
  .amdhsa_kernarg_size 120
  .amdhsa_user_sgpr_count 2
  .amdhsa_user_sgpr_kernarg_segment_ptr 1
  .amdhsa_system_sgpr_workgroup_id_x 1
  .amdhsa_float_denorm_mode_32 3
.end_amdhsa_kernel
"""
def vr(b, n=4): return f"v[{b}:{b+n-1}]"
def ar(b, n=4): return f"a[{b}:{b+n-1}]"
def sr(b, n=4): return f"s[{b}:{b+n-1}]"
def srd(A, d, base_lo, off, size):
    A(f"s_add_u32 s{d}, s{base_lo}, {off}\ns_addc_u32 s{d+1}, s{base_lo+1}, 0\ns_mov_b32 s{d+2}, {size}\ns_mov_b32 s{d+3}, 0x20000")
def round_bf16(A, v, t):
    A(f"v_cvt_pk_bf16_f32 v{v}, v{v}, v{v}\nv_lshlrev_b32 v{v}, 16, v{v}")

class Stamps:
    def __init__(self, A, on, base=64):
        self.A, self.on, self.n, self.base = A, on, 0, base
    def start(self): self()
    def __call__(self):
        if self.on:
            b = self.base + 4*self.n
            self.A(f"s_memtime s[{b}:{b+1}]\ns_memrealtime s[{b+2}:{b+3}]"); self.n += 1
            assert self.n <= 8
    def finish(self, srd, swave, koff=0):
        if not self.on: return
        A = self.A; b = self.base; t = b + 32
        self(); A("s_waitcnt vmcnt(0)"); self()
        A("s_waitcnt lgkmcnt(0)")
        A(f"s_lshl_b32 s{t}, s2, 2\ns_add_u32 s{t}, s{t}, {swave}\ns_lshl_b32 s{t}, s{t}, 7\ns_add_u32 s{t}, s{t}, {WS_STAMP+koff}\nv_mov_b32 v1, 0\ns_mov_b64 exec, 1")
        for i in range(self.n):
            A(f"v_mov_b32 v2, s{b+4*i}\nbuffer_store_dword v2, v1, {srd}, s{t} offen offset:{4*i}")
            A(f"v_mov_b32 v2, s{b+4*i+2}\nbuffer_store_dword v2, v1, {srd}, s{t} offen offset:{32+4*i}")
        A(f"v_mov_b32 v2, {self.n}\nbuffer_store_dword v2, v1, {srd}, s{t} offen offset:64")
```

```python
from common import *
NKG = 288
NLN, NMOD, NW2 = 128, 432, 432
NB = 248
K1_GRID = NKG + NB
TPITCH = 272
K1_LDS = 4*64*TPITCH
XROWS = [0,1,2,3, 4,5,6,7, 256,258,260,None, 260,262,264,None, 512,516,768,772, 516,520,772,776, 1024,1280,1536,1792, 1032,1288,1544,1800]
LOG2E = 0x3fb8aa3b
INV2PI = 0x3e22f983

def cmul(A, d, a, b):
    A(f"v_pk_mul_f32 v[{d}:{d+1}], v[{a}:{a+1}], v[{b}:{b+1}] op_sel:[0,0] op_sel_hi:[1,0]")
    A(f"v_pk_fma_f32 v[{d}:{d+1}], v[{a}:{a+1}], v[{b}:{b+1}], v[{d}:{d+1}] op_sel:[1,1,0] op_sel_hi:[0,1,1] neg_lo:[1,0,0]")

def gen_kgen(A, st):
    A(f"s_load_dwordx4 s[24:27], s[0:1], {KA['lar']}\ns_load_dwordx4 s[28:31], s[0:1], {KA['cre']}\ns_load_dwordx2 s[32:33], s[0:1], {KA['ldt']}")
    A("s_lshl_b32 s20, s2, 1\ns_lshr_b32 s21, s6, 1\ns_add_u32 s20, s20, s21\ns_and_b32 s21, s6, 1")
    A("s_lshl_b32 s22, s20, 8\ns_lshl_b32 s23, s21, 7\ns_add_u32 s22, s22, s23\nv_lshl_add_u32 v1, v0, 1, s22")
    A("s_lshl_b32 s23, s20, 1\nv_mov_b32 v2, s23")
    A("s_waitcnt lgkmcnt(0)")
    A("global_load_ushort v3, v1, s[24:25]\nglobal_load_ushort v4, v1, s[26:27]\nglobal_load_ushort v6, v1, s[28:29]\nglobal_load_ushort v7, v1, s[30:31]\nglobal_load_ushort v5, v2, s[32:33]")
    srd(A, 12, 4, 0, WS_SIZE)
    A(f"s_mul_i32 s34, s6, {64*TPITCH}\nv_lshl_add_u32 v8, v0, 2, s34")
    A(f"v_and_b32 v9, 31, v0\nv_mul_u32_u24 v9, {TPITCH}, v9\nv_lshrrev_b32 v10, 5, v0\nv_lshl_add_u32 v9, v10, 4, v9\nv_add_u32 v9, s34, v9")
    A(f"s_mov_b32 s35, {LOG2E}\ns_mov_b32 s36, {INV2PI}")
    A("s_waitcnt vmcnt(0)")
    st()
    for r in (3, 4, 5, 6, 7): A(f"v_lshlrev_b32 v{r}, 16, v{r}")
    A("v_mul_f32 v3, s35, v3\nv_mul_f32 v5, s35, v5\nv_exp_f32 v3, v3\nv_exp_f32 v5, v5")
    A("v_max_f32 v11, abs(v6), abs(v7)")
    round_bf16(A, 3, 0); round_bf16(A, 5, 0)
    A("v_mul_f32 v3, v3, v5\nv_mul_f32 v4, v4, v5")
    A("v_mul_f32 v3, s35, v3\nv_mul_f32 v4, s36, v4")
    for sh in (8, 4, 2, 1): A(f"s_nop 1\nv_max_f32_dpp v11, v11, v11 row_ror:{sh} row_mask:0xf bank_mask:0xf")
    A("s_nop 0\nv_readlane_b32 s37, v11, 0\nv_readlane_b32 s38, v11, 16\nv_readlane_b32 s39, v11, 32\nv_readlane_b32 s40, v11, 48")
    A("s_max_u32 s37, s37, s38\ns_max_u32 s39, s39, s40\ns_max_u32 s37, s37, s39")
    for (dst, p) in ((12, 1.0), (14, 8.0), (16, 256.0), (18, 16.0)):
        A(f"v_mul_f32 v20, {p!r}, v3\nv_mul_f32 v21, {p!r}, v4\nv_exp_f32 v20, -v20\nv_fract_f32 v21, v21\nv_cos_f32 v{dst}, v21\nv_sin_f32 v{dst+1}, v21\ns_nop 0")
        A(f"v_mul_f32 v{dst}, v20, v{dst}\nv_mul_f32 v{dst+1}, v20, v{dst+1}")
    A("v_frexp_exp_i32_f32 v11, s37\nv_sub_u32 v20, 0, v11\nv_ldexp_f32 v6, v6, v20\nv_ldexp_f32 v7, v7, v20")
    A("v_add_f32 v5, v5, v5\nv_ldexp_f32 v5, v5, v11")
    cmul(A, 22, 12, 12); cmul(A, 24, 22, 22)
    E = {1: 12, 2: 22, 4: 24, 8: 14, 256: 16}
    xreg = {}
    plan = [(0, None, None)] + [(p, p-1, 1) for p in range(1, 8)]
    plan += [(256, 0, 256), (512, 256, 256), (768, 512, 256), (1024, 768, 256), (1280, 1024, 256), (1536, 1280, 256), (1792, 1536, 256)]
    plan += [(258, 256, 2), (260, 256, 4), (262, 258, 4), (264, 256, 8), (516, 512, 4), (520, 512, 8), (772, 768, 4), (776, 768, 8)]
    plan += [(1032, 1024, 8), (1288, 1280, 8), (1544, 1536, 8), (1800, 1792, 8)]
    order = [plan[0]]
    c1, c2, rest = plan[1:8], plan[8:15], plan[15:]
    for a, b in zip(c1, c2): order += [a, b]
    order += rest
    xl = []
    nx = 30
    for (p, src, e) in order:
        X = Asm()
        if src is None: xreg[p] = 6
        else:
            xreg[p] = nx; nx += 2; cmul(X, xreg[p], xreg[src], E[e])
        t = 100 + len(xl) % 4
        X(f"v_cvt_pk_f16_f32 v{t}, v{xreg[p]}, -v{xreg[p]+1}")
        for i, q in enumerate(XROWS):
            if q == p or (q is None and p == 0): X(f"ds_write_b32 v8, v{t} offset:{i*TPITCH}")
        xl.append(X.l)
    yl = []
    A("v_mov_b32 v90, 1.0\nv_mov_b32 v91, 0\nv_mov_b32 v94, v14\nv_mov_b32 v95, v15")
    for q in range(32):
        Y = Asm()
        base = 90 + 4*(q % 2); cur = base + 2*((q//2) % 2); prev = base + 2*(((q//2)+1) % 2)
        if q >= 2: cmul(Y, cur, prev, 18)
        t = 104 + q % 4
        Y(f"v_cvt_pk_f16_f32 v{t}, v{cur}, v{cur+1}\nds_write_b32 v8, v{t} offset:{(32+q)*TPITCH}")
        yl.append(Y.l)
    for i in range(32):
        a = yl[i]; b = xl[i] if i < len(xl) else []
        for k in range(max(len(a), len(b))):
            if k < len(a): A.l.append(a[k])
            if k < len(b): A.l.append(b[k])
    A("s_waitcnt lgkmcnt(0)")
    st()
    for s in range(8):
        A(f"ds_read_b128 {vr(32+8*s)}, v9 offset:{32*s}\nds_read_b128 {vr(36+8*s)}, v9 offset:{32*TPITCH+32*s}")
    for s in range(8):
        A(f"s_waitcnt lgkmcnt({14-2*s})")
        A(f"v_mfma_f32_32x32x16_f16 v[112:127], {vr(32+8*s)}, {vr(36+8*s)}, {'v[112:127]' if s else 0}")
    A("v_lshlrev_b32 v12, 4, v0\nv_add_u32 v13, s34, v12")
    A(f"s_xor_b32 s38, s6, 1\ns_mul_i32 s38, s38, {64*TPITCH}\nv_add_u32 v14, s38, v12")
    A("s_nop 7\ns_nop 1")
    for i in range(0, 16, 2): A(f"v_pk_mul_f32 v[{112+i}:{113+i}], v[{112+i}:{113+i}], v[4:5] op_sel:[0,1] op_sel_hi:[1,1]")
    A("s_cmp_eq_u32 s21, 0\ns_cbranch_scc1 KG_h0")
    A("ds_write_b128 v13, v[112:115]\nds_write_b128 v13, v[116:119] offset:1024")
    for i in range(8): A(f"v_mov_b32 v{112+i}, v{120+i}")
    A("s_branch KG_h1\nKG_h0:")
    A("ds_write_b128 v13, v[120:123]\nds_write_b128 v13, v[124:127] offset:1024")
    A("KG_h1:\ns_waitcnt lgkmcnt(0)\ns_barrier")
    A("ds_read_b128 v[120:123], v14\nds_read_b128 v[124:127], v14 offset:1024")
    A("v_and_b32 v15, 31, v0\nv_lshlrev_b32 v15, 4, v15\nv_lshl_add_u32 v15, v10, 3, v15\nv_sub_u32 v15, 504, v15")
    A(f"s_mul_i32 s39, s20, {KTP}\ns_add_u32 s39, s39, {WS_KT}")
    A("v_cmp_eq_u32 vcc, 1, v10\nv_and_b32 v16, 33, v0\nv_cmp_eq_u32 s[40:41], 32, v16")
    A("s_waitcnt lgkmcnt(0)")
    for i in range(0, 8, 2): A(f"v_pk_add_f32 v[{112+i}:{113+i}], v[{112+i}:{113+i}], v[{120+i}:{121+i}]")
    def stb(B, r): A(f"buffer_store_dwordx2 v[{r}:{r+1}], v15, s[12:15], s39 offen offset:{(7-B)*512}")
    A("s_cmp_eq_u32 s21, 0\ns_cbranch_scc0 KG_far")
    A("v_cvt_pk_bf16_f32 v20, v115, v114\nv_cvt_pk_bf16_f32 v21, v113, v112"); stb(0, 20)
    A("v_cvt_pk_bf16_f32 v22, v118, v117\nv_cvt_pk_bf16_f32 v23, v116, v116"); stb(1, 22)
    A("v_mov_b32 v24, 0\nv_mov_b32 v25, 4096\nbuffer_store_dword v24, v25, s[12:15], s39 offen")
    A("s_branch K1_end\nKG_far:")
    for B, r in ((2, 112), (3, 114)):
        t = 20 + 2*(B-2)
        A(f"v_cndmask_b32 v30, v{r}, v{r+1}, vcc\nv_cvt_pk_bf16_f32 v{t}, v{r+1}, v30\nv_cvt_pk_bf16_f32 v{t+1}, v{r}, v{r}"); stb(B, t)
    for k in range(4): A(f"v_mov_b32 v{32+k}, v{116+k}\nv_mov_b32 v{36+k}, v{116+k}")
    A("s_nop 1")
    for k in range(4): A(f"v_permlane32_swap_b32 v{32+k}, v{36+k}")
    for k in range(4):
        t = 40 + 2*k
        A(f"v_cndmask_b32 v30, v{116+k}, v{32+k}, s[40:41]\nv_cvt_pk_bf16_f32 v{t}, v{116+k}, v{116+k}\nv_cvt_pk_bf16_f32 v{t+1}, v{116+k}, v30"); stb(4+k, t)
    A("s_branch K1_end")

def gen_ln(A, st):
    A(f"s_load_dwordx2 s[24:25], s[0:1], {KA['u']}")
    A("v_and_b32 v1, 15, v0\nv_lshrrev_b32 v2, 4, v0\nv_mul_u32_u24 v3, 1152, v1\nv_lshl_add_u32 v3, v2, 4, v3")
    A("s_mul_i32 s21, s20, 18432\ns_waitcnt lgkmcnt(0)")
    srd(A, 8, 24, 0, 2359296)
    FR = 176
    for s in range(18): A(f"buffer_load_dwordx4 {vr(FR+4*s)}, v3, s[8:11], s21 offen offset:{64*s}")
    srd(A, 12, 4, 0, WS_SIZE)
    A("v_and_b32 v16, 1, v1\nv_lshlrev_b32 v16, 4, v16\nv_mov_b32 v17, 0x3f80\nv_lshlrev_b32 v16, v16, v17")
    A("v_lshrrev_b32 v17, 1, v1\nv_lshlrev_b32 v18, 2, v2\nv_sub_u32 v17, v17, v18")
    for k in range(4):
        A(f"v_cmp_eq_u32 vcc, {k}, v17\nv_cmp_eq_u32 s[26:27], {k-8}, v17\nv_mov_b32 v{12+k}, 0x3f803f80\nv_cndmask_b32 v{4+k}, 0, v16, vcc\nv_cndmask_b32 v{8+k}, 0, v16, s[26:27]")
    A(f"v_lshlrev_b32 v19, 6, v1\nv_lshl_add_u32 v19, v2, 4, v19\ns_mul_i32 s22, s20, 36864\ns_add_u32 s22, s22, {WS_NX}")
    DV = 32
    for s in range(18):
        A(f"s_waitcnt vmcnt({17-s})")
        A(f"v_mfma_f32_16x16x32_bf16 {vr(DV+8*s)}, {vr(FR+4*s)}, v[4:7], 0")
        A(f"v_mfma_f32_16x16x32_bf16 {vr(DV+8*s+4)}, {vr(FR+4*s)}, v[8:11], 0")
        A(f"v_mfma_f32_16x16x32_bf16 v[20:23], {vr(FR+4*s)}, v[12:15], {'v[20:23]' if s else 0}")
        if s == 2:
            A(f"s_nop 3\nv_pk_mul_f32 v[24:25], v[{DV}:{DV+1}], v[{DV}:{DV+1}]\nv_pk_mul_f32 v[26:27], v[{DV+2}:{DV+3}], v[{DV+2}:{DV+3}]")
            A(f"v_pk_mul_f32 v[28:29], v[{DV+4}:{DV+5}], v[{DV+4}:{DV+5}]\nv_pk_mul_f32 v[30:31], v[{DV+6}:{DV+7}], v[{DV+6}:{DV+7}]")
        if s > 2:
            b = DV + 8*(s-2)
            for k in range(4): A(f"v_pk_fma_f32 v[{24+2*k}:{25+2*k}], v[{b+2*k}:{b+2*k+1}], v[{b+2*k}:{b+2*k+1}], v[{24+2*k}:{25+2*k}]")
    st()
    A("s_mov_b32 s30, 0x3ae38e39\ns_nop 1")
    for s in (16, 17):
        b = DV + 8*s
        for k in range(4): A(f"v_pk_fma_f32 v[{24+2*k}:{25+2*k}], v[{b+2*k}:{b+2*k+1}], v[{b+2*k}:{b+2*k+1}], v[{24+2*k}:{25+2*k}]")
    A("v_pk_add_f32 v[24:25], v[24:25], v[28:29]\nv_pk_add_f32 v[26:27], v[26:27], v[30:31]\ns_nop 0")
    for sh in (8, 4, 2, 1):
        for r in range(4): A(f"v_add_f32_dpp v{24+r}, v{24+r}, v{24+r} row_ror:{sh} row_mask:0xf bank_mask:0xf")
    def each(f):
        for r in range(4): A(f(r))
    each(lambda r: f"v_mul_f32 v{20+r}, s30, v{20+r}")
    each(lambda r: f"v_mul_f32 v{24+r}, s30, v{24+r}")
    each(lambda r: f"v_fma_f32 v{24+r}, -v{20+r}, v{20+r}, v{24+r}\nv_max_f32 v{24+r}, 0, v{24+r}")
    def rnd(b):
        A(f"v_cvt_pk_bf16_f32 v{b+1}, v{b}, v{b+1}\nv_cvt_pk_bf16_f32 v{b+3}, v{b+2}, v{b+3}")
        A(f"v_lshlrev_b32 v{b}, 16, v{b+1}\nv_and_b32 v{b+1}, 0xffff0000, v{b+1}\nv_lshlrev_b32 v{b+2}, 16, v{b+3}\nv_and_b32 v{b+3}, 0xffff0000, v{b+3}")
    rnd(24); each(lambda r: f"v_add_f32 v{24+r}, 0x3727c5ac, v{24+r}"); rnd(24)
    each(lambda r: f"v_sqrt_f32 v{24+r}, v{24+r}"); A("s_nop 0"); rnd(24)
    each(lambda r: f"v_rcp_f32 v{24+r}, v{24+r}"); rnd(20)
    each(lambda r: f"v_mul_f32 v{20+r}, -v{20+r}, v{24+r}")
    for c in range(36):
        b = DV + 4*c; T = FR + 4*(c % 16)
        A(f"v_cvt_pk_bf16_f32 v{T+2}, v{b}, v{b+1}\nv_cvt_pk_bf16_f32 v{T+3}, v{b+2}, v{b+3}")
        A(f"v_pk_fma_f32 v[{b}:{b+1}], v[{b}:{b+1}], v[24:25], v[20:21]\nv_pk_fma_f32 v[{b+2}:{b+3}], v[{b+2}:{b+3}], v[26:27], v[22:23]")
        A(f"v_cvt_pk_bf16_f32 v{T}, v{b}, v{b+1}\nv_cvt_pk_bf16_f32 v{T+1}, v{b+2}, v{b+3}")
        A(f"buffer_store_dwordx4 {vr(T)}, v19, s[12:15], s22 offen offset:{(c % 4)*1024}")
        if c % 4 == 3: A("s_add_u32 s22, s22, 4096")
    A("s_branch K1_end")

def gen_mod(A, st):
    A(f"s_load_dwordx4 s[24:27], s[0:1], {KA['c']}")
    A("s_and_b32 s21, s20, 7\ns_lshr_b32 s22, s20, 3")
    A("v_lshrrev_b32 v1, 3, v0\nv_and_b32 v2, 7, v0\nv_mul_u32_u24 v3, 6912, v1\nv_lshl_add_u32 v3, v2, 4, v3")
    A("s_mul_i32 s23, s21, 497664\ns_lshl_b32 s28, s22, 7\ns_add_u32 s23, s23, s28")
    A("s_mul_i32 s29, s21, 144\nv_lshl_add_u32 v4, v1, 1, s29")
    A("s_waitcnt lgkmcnt(0)")
    srd(A, 8, 26, 0, 576*6912)
    for it in range(9): A(f"global_load_ushort v{10+it}, v4, s[24:25] offset:{16*it}")
    for it in range(9):
        A(f"buffer_load_dwordx4 {vr(32+4*it)}, v3, s[8:11], s23 offen\ns_add_u32 s23, s23, 55296")
    srd(A, 12, 4, 0, WS_SIZE)
    A(f"s_mov_b32 s35, {LOG2E}\ns_waitcnt vmcnt(9)")
    def each(f):
        for it in range(9): A(f(it))
    each(lambda i: f"v_lshlrev_b32 v{10+i}, 16, v{10+i}")
    each(lambda i: f"v_mul_f32 v{20+i}, s35, v{10+i}")
    each(lambda i: f"v_exp_f32 v{20+i}, -v{20+i}")
    each(lambda i: f"v_add_f32 v{20+i}, 1.0, v{20+i}")
    each(lambda i: f"v_rcp_f32 v{20+i}, v{20+i}")
    each(lambda i: f"v_mul_f32 v{10+i}, v{10+i}, v{20+i}")
    each(lambda i: f"v_cvt_pk_bf16_f32 v{10+i}, v{10+i}, v{10+i}")
    each(lambda i: f"v_lshlrev_b32 v{10+i}, 16, v{10+i}")
    for it in range(9):
        A(f"s_waitcnt vmcnt({8-it})")
        for k in range(4):
            w = 32 + 4*it + k
            A(f"v_lshlrev_b32 v72, 16, v{w}\nv_and_b32 v73, 0xffff0000, v{w}")
            if it == 0: A(f"v_mul_f32 v{80+2*k}, v72, v10\nv_mul_f32 v{81+2*k}, v73, v10")
            else: A(f"v_fmac_f32 v{80+2*k}, v72, v{10+it}\nv_fmac_f32 v{81+2*k}, v73, v{10+it}")
    A("s_nop 1")
    for k in range(4): A(f"v_permlane32_swap_b32 v{80+k}, v{84+k}")
    for k in range(4): A(f"v_add_f32 v{80+k}, v{80+k}, v{84+k}")
    A("s_nop 1")
    for k in range(2): A(f"v_permlane16_swap_b32 v{80+k}, v{82+k}")
    for k in range(2): A(f"v_add_f32 v{80+k}, v{80+k}, v{82+k}")
    A("v_lshrrev_b32 v5, 4, v0\nv_lshlrev_b32 v5, 3, v5\nv_lshl_add_u32 v5, v2, 5, v5")
    for k in range(2): A(f"v_add_f32_dpp v{80+k}, v{80+k}, v{80+k} row_ror:8 row_mask:0xf bank_mask:0xf")
    A(f"s_mul_i32 s23, s21, 13824\ns_lshl_b32 s28, s22, 8\ns_add_u32 s23, s23, s28\ns_add_u32 s23, s23, {WS_MODP}")
    A("buffer_store_dwordx2 v[80:81], v5, s[12:15], s23 offen")
    A("s_branch K1_end")

def gen_w2(A, st):
    A(f"s_load_dwordx2 s[24:25], s[0:1], {KA['w2']}")
    A("s_and_b32 s21, s20, 7\ns_lshr_b32 s22, s20, 3\ns_mul_i32 s23, s22, 57\ns_lshr_b32 s23, s23, 9\ns_mul_i32 s26, s23, 9\ns_sub_u32 s22, s22, s26")
    A("v_and_b32 v1, 15, v0\nv_lshrrev_b32 v2, 4, v0\nv_mul_u32_u24 v3, 18432, v2\nv_lshl_add_u32 v3, v1, 3, v3")
    for m in range(1, 4): A(f"v_add_u32 v{3+m}, {4608*m}, v3")
    A("v_lshlrev_b32 v7, 4, v0")
    A("s_mul_i32 s26, s21, 36\ns_mul_i32 s27, s23, 6\ns_add_u32 s26, s26, s27\ns_lshl_b32 s28, s22, 7")
    A("s_waitcnt lgkmcnt(0)")
    srd(A, 8, 24, 0, 4608*1152)
    for u in range(3):
        A(f"s_add_u32 s27, s26, {2*u}\ns_lshr_b32 s29, s27, 2\ns_lshl_b32 s29, s29, 6\ns_and_b32 s27, s27, 3\ns_add_u32 s27, s27, s29\ns_mul_i32 s27, s27, 1152\ns_add_u32 s27, s27, s28")
        for j in range(8):
            r = 32 + u*16 + 2*j
            A(f"buffer_load_dwordx2 v[{r}:{r+1}], v{3 + j % 4}, s[8:11], s27 offen offset:{(j//4)*1152}")
    srd(A, 12, 4, 0, WS_SIZE)
    for e in range(4):
        A(f"s_lshl_b32 s27, s22, 2\ns_add_u32 s27, s27, {e}\ns_mul_i32 s29, s27, 57\ns_lshr_b32 s29, s29, 9\ns_mul_i32 s30, s29, 9\ns_sub_u32 s27, s27, s30")
        A(f"s_lshl_b32 s30, s21, 2\ns_add_u32 s30, s30, s29\ns_mul_i32 s30, s30, {NFR}")
        A("s_mul_i32 s29, s27, 86\ns_lshr_b32 s29, s29, 8\ns_mul_i32 s31, s29, 51\ns_add_u32 s30, s30, s31\ns_add_u32 s30, s30, s27")
        A(f"s_mul_i32 s31, s23, 9\ns_add_u32 s30, s30, s31\ns_lshl_b32 s30, s30, 10\ns_add_u32 s{40+e}, s30, {WS_W + 171*1024}")
    A("s_mov_b32 s36, 0x05040100\ns_mov_b32 s37, 0x07060302\nv_add_u32 v8, 6144, v7")
    for u in range(3):
        A(f"s_waitcnt vmcnt({16 - 8*u + 4*u})")
        for e in range(4):
            T = 96 + (u*4+e)*4
            for k in range(4):
                lo = 32 + u*16 + 4*k + e//2; hi = lo + 2
                A(f"v_perm_b32 v{T+k}, v{hi}, v{lo}, s{36 + e % 2}")
            A(f"buffer_store_dwordx4 {vr(T)}, {'v7' if u < 2 else 'v8'}, s[12:15], s{40+e} offen offset:{3072*u if u < 2 else 0}")

def gen_k1(opt=None):
    opt = opt or {}
    A = Asm(); st = Stamps(A, opt.get("stamp"))
    A(f"s_cmp_ge_u32 s2, {K1_GRID}\ns_cbranch_scc1 K1_done")
    st.start()
    A(f"s_load_dwordx2 s[4:5], s[0:1], {KA['ws']}")
    A("v_lshrrev_b32 v1, 6, v0\nv_and_b32 v0, 63, v0\ns_nop 0\nv_readfirstlane_b32 s6, v1")
    A(f"s_cmp_ge_u32 s2, {NKG}\ns_cbranch_scc1 K1_jobs")
    n0 = st.n
    gen_kgen(A, st); nmax = st.n
    A("K1_jobs:")
    A(f"s_sub_u32 s20, s2, {NKG}\ns_cmp_ge_u32 s20, 128\ns_cbranch_scc1 K1_j2")
    A("s_cmp_eq_u32 s6, 0\ns_cbranch_scc1 K1_ln")
    A("s_mul_i32 s20, s20, 3\ns_add_u32 s20, s20, s6\ns_sub_u32 s20, s20, 1\ns_branch K1_j3")
    A("K1_j2:\ns_lshl_b32 s20, s20, 2\ns_add_u32 s20, s20, s6\ns_sub_u32 s20, s20, 128")
    A(f"K1_j3:\ns_cmp_ge_u32 s20, {NMOD}\ns_cbranch_scc1 K1_w2")
    st.n = n0; st(); st(); gen_mod(A, st)
    A("K1_ln:"); st.n = n0; st(); gen_ln(A, st)
    A(f"K1_w2:\ns_sub_u32 s20, s20, {NMOD}"); st.n = n0; st(); st(); gen_w2(A, st)
    A("K1_end:")
    st.n = nmax
    st.finish("s[12:15]", "s6", 0)
    A("K1_done:")
    return kernel("k1_kernel", A.text(), 248)
```

```python
from common import *
NCV, NSW = 144, 108
K2_GRID = NCV + NSW
CPITCH = 4160
WREG = 2*CPITCH + 4608
K2_LDS = 4*WREG

def gen_conv(A, st, opt):
    A(f"s_load_dwordx2 s[24:25], s[0:1], {KA['dsk']}")
    A("s_lshl_b32 s20, s2, 2\ns_add_u32 s20, s20, s6")
    A(f"s_mul_i32 s21, s6, {WREG}")
    A("v_and_b32 v1, 15, v0\nv_lshrrev_b32 v2, 4, v0\nv_lshlrev_b32 v3, 4, v0")
    A("v_mul_u32_u24 v4, 36864, v1\nv_lshl_add_u32 v4, v2, 4, v4")
    A(f"s_lshl_b32 s22, s20, 6\ns_add_u32 s22, s22, {WS_NX}")
    A(f"s_mul_i32 s23, s20, {KTP}\ns_add_u32 s23, s23, {WS_KT}")
    A("v_and_b32 v5, 7, v0\nv_mul_u32_u24 v5, 13824, v5\nv_bfe_u32 v6, v0, 3, 2\nv_mul_u32_u24 v6, 2304, v6\nv_add_u32 v5, v5, v6")
    A(f"s_lshl_b32 s26, s20, 2\ns_add_u32 s26, s26, {WS_MODP}\ns_lshl_b32 s27, s20, 1\nv_mov_b32 v6, s27")
    A("s_mov_b32 m0, s21\ns_waitcnt lgkmcnt(0)")
    srd(A, 12, 4, 0, WS_SIZE)
    A("buffer_load_dword v7, v5, s[12:15], s26 offen\nglobal_load_ushort v8, v6, s[24:25]")
    NXR = 64
    for t in range(8):
        A(f"buffer_load_dwordx4 {vr(NXR+4*t)}, v4, s[12:15], s22 offen\ns_add_u32 s22, s22, {16*36864}")
    for k in range(4): A(f"buffer_load_dwordx4 v3, s[12:15], s23 offen offset:{1024*k} lds")
    A(f"s_add_u32 m0, m0, {CPITCH}\ns_add_u32 s23, s23, 2")
    for k in range(4): A(f"buffer_load_dwordx4 v3, s[12:15], s23 offen offset:{1024*k} lds")
    A("v_mov_b32 v10, 0\nv_mov_b32 v11, 0\nv_lshlrev_b32 v9, 3, v0\nv_add_u32 v9, s21, v9")
    A(f"ds_write_b64 v9, v[10:11] offset:{2*CPITCH}")
    A("v_lshlrev_b32 v12, 2, v1\nv_add_u32 v12, s21, v12")
    A(f"ds_write_b32 v12, v10 offset:4096\nds_write_b32 v12, v10 offset:{CPITCH+4096}")
    A(f"v_lshlrev_b32 v13, 5, v1\nv_lshl_add_u32 v13, v2, 3, v13\nv_add_u32 v13, s21, v13")
    A(f"v_lshlrev_b32 v14, 5, v1\nv_lshl_add_u32 v14, v2, 4, v14\nv_add_u32 v14, s21, v14\nv_add_u32 v14, {2*CPITCH+32}, v14")
    A(f"v_sub_u32 v15, 15, v1\nv_and_b32 v16, 1, v15\nv_mul_u32_u24 v16, {CPITCH-2}, v16\nv_lshl_add_u32 v16, v15, 1, v16\nv_lshl_add_u32 v16, v2, 4, v16\nv_add_u32 v16, s21, v16")
    for k in range(1, 4): A(f"v_add_u32 v{16+k}, {1024*k}, v16")
    A("s_bfe_u32 s27, s20, 0x10001\ns_bfe_u32 s28, s20, 0x10003\ns_lshl_b32 s28, s28, 1\ns_or_b32 s27, s27, s28")
    A("v_lshrrev_b32 v20, 2, v1\nv_mul_u32_u24 v20, 73728, v20\nv_and_b32 v21, 3, v1\nv_xor_b32 v21, s27, v21\nv_lshl_add_u32 v20, v21, 5, v20\nv_lshl_add_u32 v20, v2, 3, v20")
    A(f"s_lshl_b32 s29, s20, 7\ns_add_u32 s29, s29, {WS_X1T}")
    A("s_waitcnt vmcnt(16)")
    for sh in (4, 2, 1): A(f"s_nop 1\nv_add_f32_dpp v7, v7, v7 row_shl:{sh} row_mask:0xf bank_mask:0xf")
    A("v_lshlrev_b32 v8, 16, v8")
    round_bf16(A, 7, 0)
    A("s_nop 0\nv_readlane_b32 s30, v7, 0\nv_readlane_b32 s31, v7, 8\nv_readlane_b32 s34, v7, 16\nv_readfirstlane_b32 s36, v8\ns_nop 0")
    A("v_add_f32 v7, 1.0, s31"); round_bf16(A, 7, 0)
    A("s_nop 0\nv_readfirstlane_b32 s32, v7\ns_mov_b32 s31, s30\ns_mov_b32 s35, s34\ns_mov_b32 s37, s36\ns_mov_b32 s33, s32")
    st()
    HF = 96
    for t in range(8):
        n = NXR + 4*t; h = HF + 4*t
        A(f"s_waitcnt vmcnt({15-t})")
        A(f"v_lshlrev_b32 v{h}, 16, v{n}\nv_and_b32 v{h+1}, 0xffff0000, v{n}\nv_lshlrev_b32 v{h+2}, 16, v{n+1}\nv_and_b32 v{h+3}, 0xffff0000, v{n+1}")
        A(f"v_pk_mul_f32 v[{h}:{h+1}], v[{h}:{h+1}], s[32:33]\nv_pk_mul_f32 v[{h+2}:{h+3}], v[{h+2}:{h+3}], s[32:33]")
        A(f"v_cvt_pk_bf16_f32 v{n}, v{h}, v{h+1}\nv_cvt_pk_bf16_f32 v{n+1}, v{h+2}, v{h+3}")
        A(f"v_lshlrev_b32 v{h}, 16, v{n}\nv_and_b32 v{h+1}, 0xffff0000, v{n}\nv_lshlrev_b32 v{h+2}, 16, v{n+1}\nv_and_b32 v{h+3}, 0xffff0000, v{n+1}")
        A(f"v_pk_add_f32 v[{h}:{h+1}], v[{h}:{h+1}], s[30:31]\nv_pk_add_f32 v[{h+2}:{h+3}], v[{h+2}:{h+3}], s[30:31]")
        A(f"v_cvt_pk_bf16_f32 v{n}, v{h}, v{h+1}\nv_cvt_pk_bf16_f32 v{n+1}, v{h+2}, v{h+3}")
        A(f"ds_write_b64 v13, v[{n}:{n+1}] offset:{2*CPITCH+512+512*t}")
    A("s_waitcnt vmcnt(0) lgkmcnt(0)")
    st()
    Y = 32
    FB = [128, 192]
    def reads(r):
        l = []; b = FB[r % 2]
        for k in range(8):
            q = k; u = k
            l.append(f"ds_read_b128 {vr(b+32+4*u)}, v14 offset:{512*u + 64*(7-r)}")
            o = ((7-q) % 2)*128 + 16*(7-r); vb = 16 + (7-q)//2
            l.append(f"ds_read2_b32 v[{b+4*q}:{b+4*q+1}], v{vb} offset0:{o} offset1:{o+1}")
            l.append(f"ds_read2_b32 v[{b+4*q+2}:{b+4*q+3}], v{vb} offset0:{o+2} offset1:{o+3}")
        return l
    for x in reads(0): A(x)
    def skipterm():
        l = []
        for t in range(8):
            n = NXR + 4*t; h = HF + 4*t
            l += [f"v_lshlrev_b32 v{h}, 16, v{n}", f"v_and_b32 v{h+1}, 0xffff0000, v{n}", f"v_lshlrev_b32 v{h+2}, 16, v{n+1}", f"v_and_b32 v{h+3}, 0xffff0000, v{n+1}"]
            l += [f"v_mul_f32 v{h+k}, s36, v{h+k}" for k in range(4)]
            l += [f"v_cvt_pk_bf16_f32 v{n}, v{h}, v{h+1}", f"v_cvt_pk_bf16_f32 v{n+1}, v{h+2}, v{h+3}"]
            l += [f"v_lshlrev_b32 v{h}, 16, v{n}", f"v_and_b32 v{h+1}, 0xffff0000, v{n}", f"v_lshlrev_b32 v{h+2}, 16, v{n+1}", f"v_and_b32 v{h+3}, 0xffff0000, v{n+1}"]
        return l
    sk = skipterm()
    for r in range(8):
        nxt = reads(r+1) if r < 7 else []
        b = FB[r % 2]
        A("s_waitcnt lgkmcnt(0)")
        cnt = 0
        for t in range(8):
            for q in range(t+1):
                u = t - q
                A(f"v_mfma_f32_16x16x32_bf16 {vr(Y+4*t)}, {vr(b+4*q)}, {vr(b+32+4*u)}, {vr(Y+4*t) if (r or q) else 0}")
                if nxt: A(nxt.pop(0))
                elif sk and r >= 1:
                    A(sk.pop(0))
                    if r == 7 and sk: A(sk.pop(0))
    for x in sk: A(x)
    st()
    def unp(d, s): A(f"v_lshlrev_b32 v{d}, 16, v{s}\nv_and_b32 v{d+1}, 0xffff0000, v{s}\nv_lshlrev_b32 v{d+2}, 16, v{s+1}\nv_and_b32 v{d+3}, 0xffff0000, v{s+1}")
    def rnd(y, T):
        A(f"v_cvt_pk_bf16_f32 v{T}, v{y}, v{y+1}\nv_cvt_pk_bf16_f32 v{T+1}, v{y+2}, v{y+3}"); unp(y, T)
    for t in range(8):
        y = Y + 4*t; h = HF + 4*t; n = NXR + 4*t; T = 128 + 2*t
        rnd(y, T)
        A(f"v_pk_add_f32 v[{y}:{y+1}], v[{y}:{y+1}], v[{h}:{h+1}]\nv_pk_add_f32 v[{y+2}:{y+3}], v[{y+2}:{y+3}], v[{h+2}:{h+3}]")
        rnd(y, T)
        A(f"v_pk_mul_f32 v[{y}:{y+1}], v[{y}:{y+1}], s[34:35]\nv_pk_mul_f32 v[{y+2}:{y+3}], v[{y+2}:{y+3}], s[34:35]")
        rnd(y, T); unp(h, n+2)
        A(f"v_pk_add_f32 v[{y}:{y+1}], v[{y}:{y+1}], v[{h}:{h+1}]\nv_pk_add_f32 v[{y+2}:{y+3}], v[{y+2}:{y+3}], v[{h+2}:{h+3}]")
        A(f"v_cvt_pk_bf16_f32 v{T}, v{y}, v{y+1}\nv_cvt_pk_bf16_f32 v{T+1}, v{y+2}, v{y+3}")
        A(f"buffer_store_dwordx2 v[{T}:{T+1}], v20, s[12:15], s29 offen\ns_add_u32 s29, s29, {4*73728}")
    A("s_branch K2_end")

def gen_w1(A, st, opt):
    A(f"s_load_dwordx2 s[24:25], s[0:1], {KA['w1']}")
    A(f"s_sub_u32 s20, s2, {NCV}\ns_mul_i32 s21, s20, 43\ns_lshr_b32 s21, s21, 8\ns_mul_i32 s22, s21, 6\ns_sub_u32 s20, s20, s22")
    A("s_lshl_b32 s22, s21, 2\ns_add_u32 s22, s22, s6")
    A("v_and_b32 v1, 15, v0\nv_lshrrev_b32 v2, 4, v0\nv_mul_u32_u24 v3, 73728, v2\nv_lshl_add_u32 v3, v1, 3, v3")
    A("s_mul_i32 s23, s20, 884736\ns_lshl_b32 s26, s22, 7\ns_add_u32 s23, s23, s26")
    A("v_cmp_le_u32 vcc, 96, v30\nv_mov_b32 v5, 1920\nv_lshlrev_b32 v4, 2, v30\nv_cndmask_b32 v5, 0, v5, vcc\nv_add_u32 v4, v4, v5")
    A(f"s_mul_i32 s27, s20, 384\ns_add_u32 s28, s27, {WS_MODP + 3*2304}")
    A("s_waitcnt lgkmcnt(0)")
    srd(A, 12, 4, 0, WS_SIZE)
    srd(A, 8, 24, 0, 576*9216)
    for k in range(8):
        A(f"buffer_load_dword v{8+k}, v4, s[12:15], s28 offen\ns_add_u32 s28, s28, 13824")
    for u in range(3):
        for j in range(8):
            r = 32 + u*16 + 2*j
            A(f"buffer_load_dwordx2 v[{r}:{r+1}], v3, s[8:11], s23 offen\ns_add_u32 s23, s23, {9216 if j < 7 else 9216*25}")
    for e in range(4):
        A(f"s_lshl_b32 s29, s22, 2\ns_add_u32 s29, s29, {e}\ns_mul_i32 s30, s29, 7282\ns_lshr_b32 s30, s30, 16\ns_mul_i32 s31, s30, {NFR-9}\ns_add_u32 s31, s31, s29")
        A(f"s_lshl_b32 s31, s31, 10\ns_add_u32 s{44+e}, s31, {WS_W + 162*1024}\ns_mul_i32 s29, s20, {27*1024}\ns_add_u32 s31, s31, s29\ns_add_u32 s{40+e}, s31, {WS_W}")
    A("v_lshlrev_b32 v7, 4, v0")
    A("v_lshlrev_b32 v6, 3, v30\nv_mov_b32 v5, 0xfffffd00\nv_cndmask_b32 v5, 4, v5, vcc\nv_add_u32 v6, v6, v5\nv_lshlrev_b32 v16, 6, v2")
    A("v_mov_b32 v20, 0x3f803f80\nv_mov_b32 v21, v20\nv_mov_b32 v22, v20\nv_mov_b32 v23, v20")
    A("s_waitcnt vmcnt(24)")
    A("v_add_f32 v8, v8, v9\nv_add_f32 v10, v10, v11\nv_add_f32 v12, v12, v13\nv_add_f32 v14, v14, v15\nv_add_f32 v8, v8, v10\nv_add_f32 v12, v12, v14\nv_add_f32 v8, v8, v12")
    round_bf16(A, 8, 0)
    A("v_add_f32 v9, 1.0, v8"); round_bf16(A, 9, 0)
    A("v_cndmask_b32 v8, v8, v9, vcc\nds_write_b32 v6, v8")
    A("s_waitcnt lgkmcnt(0)\ns_barrier")
    st()
    TB = 80
    for u in range(3):
        for k in range(4): A(f"ds_read_b128 {vr(TB+16*u+4*k)}, v16 offset:{256*u+16*k}")
    UP = 128
    BI = 24
    CS = 160
    FO = 176
    for u in range(3):
        A(f"s_waitcnt vmcnt({16 - 8*u + 4*u}) lgkmcnt({8-4*u})")
        for j in range(8):
            r = 32 + u*16 + 2*j; d = UP + 4*j; tb = TB + 16*u + 2*j
            A(f"v_lshlrev_b32 v{d}, 16, v{r}\nv_and_b32 v{d+1}, 0xffff0000, v{r}\nv_lshlrev_b32 v{d+2}, 16, v{r+1}\nv_and_b32 v{d+3}, 0xffff0000, v{r+1}")
            for k in (0, 2):
                if u == 0 and j == 0: A(f"v_pk_mul_f32 v[{BI+k}:{BI+k+1}], v[{d+k}:{d+k+1}], v[{tb}:{tb+1}] op_sel:[0,1] op_sel_hi:[1,1]")
                else: A(f"v_pk_fma_f32 v[{BI+k}:{BI+k+1}], v[{d+k}:{d+k+1}], v[{tb}:{tb+1}], v[{BI+k}:{BI+k+1}] op_sel:[0,1,0] op_sel_hi:[1,1,1]")
            for k in (0, 2):
                A(f"v_pk_mul_f32 v[{d+k}:{d+k+1}], v[{d+k}:{d+k+1}], v[{tb}:{tb+1}] op_sel:[0,0] op_sel_hi:[1,0]")
        for e in range(4):
            T = FO + (u*4+e)*4
            for k in range(4): A(f"v_cvt_pk_bf16_f32 v{T+k}, v{UP+8*k+e}, v{UP+8*k+4+e}")
            A(f"buffer_store_dwordx4 {vr(T)}, v7, s[12:15], s{40+e} offen\ns_add_u32 s{40+e}, s{40+e}, 9216")
            A(f"v_mfma_f32_16x16x32_bf16 {vr(CS+4*e)}, v[20:23], {vr(T)}, {vr(CS+4*e) if u else 0}")
    for k in range(4): A(f"v_mov_b32 v{8+k}, v{BI+k}")
    A("s_nop 1")
    for k in range(4): A(f"v_permlane32_swap_b32 v{BI+k}, v{8+k}")
    for k in range(4): A(f"v_add_f32 v{BI+k}, v{BI+k}, v{8+k}")
    for k in range(4): A(f"v_mov_b32 v{8+k}, v{BI+k}")
    A("s_nop 1")
    for k in range(4): A(f"v_permlane16_swap_b32 v{BI+k}, v{8+k}")
    for k in range(4): A(f"v_add_f32 v{BI+k}, v{BI+k}, v{8+k}")
    A("s_lshr_b32 s29, s20, 1\ns_lshl_b32 s29, s29, 8\ns_and_b32 s30, s20, 1\ns_lshl_b32 s30, s30, 3\ns_add_u32 s29, s29, s30\ns_add_u32 s30, s30, 768")
    A("s_cmp_lt_u32 s20, 2\ns_cselect_b32 s30, s30, 0x70000000")
    A("v_cmp_eq_u32 vcc, 0, v2\nv_cmp_eq_u32 s[32:33], 1, v2\nv_mov_b32 v12, 0x70000000\nv_mov_b32 v13, s29\nv_mov_b32 v14, s30")
    A("v_cndmask_b32 v12, v12, v13, vcc\nv_cndmask_b32 v12, v12, v14, s[32:33]\nv_lshl_add_u32 v12, v1, 4, v12")
    for e in range(4):
        b = BI + e; c = CS + 4*e; T = 32 + 2*e
        A(f"v_cvt_pk_bf16_f32 v8, v{b}, v{c}\nv_lshlrev_b32 v9, 16, v8\nv_and_b32 v10, 0xffff0000, v8\nv_sub_f32 v15, v{b}, v9\nv_sub_f32 v11, v{c}, v10")
        A(f"v_cvt_pk_bf16_f32 v{T}, v9, v15\nv_cvt_pk_bf16_f32 v{T+1}, v10, v11\nv_cndmask_b32 v{T}, 0, v{T}, vcc\nv_cndmask_b32 v{T+1}, 0, v{T+1}, vcc")
        A(f"buffer_store_dwordx2 v[{T}:{T+1}], v12, s[12:15], s{44+e} offen")
    A("s_cmp_eq_u32 s21, 0\ns_cbranch_scc0 K2_end")
    A(f"v_cmp_gt_u32 vcc, 96, v30\nv_mov_b32 v5, 0x70000000\nv_lshlrev_b32 v4, 2, v30\nv_cndmask_b32 v4, v5, v4, vcc\ns_add_u32 s28, s27, {WS_MODP + 5*2304}")
    for k in range(8):
        A(f"buffer_load_dword v{48+k}, v4, s[12:15], s28 offen\ns_add_u32 s28, s28, 13824")
    A(f"s_add_u32 s28, s27, {WS_GB}\ns_waitcnt vmcnt(0)")
    A("v_add_f32 v48, v48, v49\nv_add_f32 v50, v50, v51\nv_add_f32 v52, v52, v53\nv_add_f32 v54, v54, v55\nv_add_f32 v48, v48, v50\nv_add_f32 v52, v52, v54\nv_add_f32 v48, v48, v52")
    round_bf16(A, 48, 0)
    A("buffer_store_dword v48, v4, s[12:15], s28 offen")

def gen_k2(opt=None):
    opt = opt or {}
    A = Asm(); st = Stamps(A, opt.get("stamp"))
    A(f"s_cmp_ge_u32 s2, {K2_GRID}\ns_cbranch_scc1 K2_done")
    st.start()
    A(f"s_load_dwordx2 s[4:5], s[0:1], {KA['ws']}")
    A("v_mov_b32 v30, v0\nv_lshrrev_b32 v1, 6, v0\nv_and_b32 v0, 63, v0\ns_nop 0\nv_readfirstlane_b32 s6, v1")
    A(f"s_cmp_ge_u32 s2, {NCV}\ns_cbranch_scc1 K2_w1")
    n0 = st.n
    gen_conv(A, st, opt); nmax = st.n
    A("K2_w1:"); st.n = n0; st(); st()
    gen_w1(A, st, opt)
    A("K2_end:")
    st.n = nmax
    st.finish("s[12:15]", "s6", 0x100000)
    A("K2_done:")
    return kernel("k2_kernel", A.text(), 256)
```

```python
from common import *

XB, HB, SB, DUM = 0, 73728, 147456, 148480
K3_LDS = 149504
def gen_k3(opt=None):
    opt = opt or {}
    A = Asm()
    st = Stamps(A, opt.get("stamp"))
    ACC = 32
    TMP = 176
    S1, S2 = 24, 28
    RING, XF, ONES = 0, 216, 248
    def acc(c, a): return ACC + (c*4 + a)*4
    def ring(s, c): return RING + (s % 6)*36 + c*4
    def xf(s, a): return XF + (s % 2)*16 + a*4
    MF = "v_mfma_f32_16x16x32_bf16"
    A("s_cmp_ge_u32 s2, 256\ns_cbranch_scc1 K3_done")
    st.start()
    A(f"s_load_dwordx2 s[4:5], s[0:1], {KA['ws']}")
    A("v_lshrrev_b32 v1, 6, v0\nv_and_b32 v0, 63, v0\nv_lshlrev_b32 v2, 4, v0")
    A("v_readfirstlane_b32 s6, v1")
    if opt.get("map1"):
        A("s_and_b32 s7, s2, 7\ns_lshr_b32 s3, s2, 3")
    else:
        A("s_and_b32 s7, s2, 3\ns_lshl_b32 s7, s7, 1\ns_bfe_u32 s3, s2, 0x10003\ns_add_u32 s7, s7, s3")
        A("s_bfe_u32 s3, s2, 0x10002\ns_lshl_b32 s3, s3, 4\ns_lshr_b32 s20, s2, 4\ns_add_u32 s3, s3, s20")
    A("v_add_u32 v3, 4096, v2\nv_add_u32 v4, 8192, v2")
    A(f"s_lshl_b32 s20, s7, 2\ns_add_u32 s20, s20, s6\ns_mul_i32 s20, s20, {NFR*1024}\ns_add_u32 s20, s20, {WS_W}")
    A(f"s_mul_i32 s21, s3, 73728\ns_lshl_b32 s22, s6, 10\ns_add_u32 s21, s21, s22\ns_add_u32 s21, s21, {WS_X1T}")
    A("s_mov_b32 m0, s22\ns_mov_b32 s16, 0")
    A("s_waitcnt lgkmcnt(0)")
    if opt.get("fine"): st()
    srd(A, 12, 4, 0, WS_SIZE)
    srd(A, 8, 4, "s20", NFR*1024)
    def xdma():
        A("buffer_load_dwordx4 v2, s[12:15], s21 offen lds\ns_add_u32 m0, m0, 4096\ns_add_u32 s21, s21, 4096")
    def wload(s, c):
        if opt.get("noload") and s >= 6: return
        vo = ["v2", "v3", "v4"][c // 4]
        A(f"buffer_load_dwordx4 {ar(ring(s, c))}, {vo}, s[8:11], s16 offen offset:{(c % 4)*1024}")
    LA = int(opt.get("la", 3)); LA2 = LA + 1
    B = Asm()
    B("v_lshrrev_b32 v10, 4, v0\nv_bfe_u32 v11, v0, 2, 2\nv_and_b32 v12, 3, v0")
    B("v_lshl_add_u32 v13, v10, 3, v11\nv_lshlrev_b32 v13, 7, v13\nv_lshl_add_u32 v13, v12, 3, v13")
    B("v_lshrrev_b32 v14, 1, v11\nv_and_b32 v15, 1, v10\nv_lshl_or_b32 v14, v15, 1, v14")
    for j in range(4):
        B(f"s_add_u32 s{32+j}, s6, {j}\ns_and_b32 s{32+j}, s{32+j}, 3\nv_xor_b32 v15, s{32+j}, v14\nv_lshl_add_u32 v{16+j}, v15, 5, v13")
    B("s_lshl_b32 s25, s7, 12\nv_add_u32 v23, s25, v16")
    for i in range(S1, ACC + 144): B(f"v_mov_b32 v{i}, 0")
    B("v_mov_b32 v15, 0x3f803f80")
    for i in range(4): B(f"v_accvgpr_write_b32 a{ONES+i}, v15")
    B("s_mul_i32 s24, s6, 9")
    for k in range(2):
        B(f"s_add_u32 s25, s24, {k}\ns_lshr_b32 s26, s25, 1\ns_lshl_b32 s26, s26, 12\ns_and_b32 s25, s25, 1\ns_lshl_b32 s25, s25, 3\ns_add_u32 s25, s25, s26\ns_add_u32 s25, s25, {HB}")
        for j in range(4):
            B(f"s_lshl_b32 s26, s{32+j}, 10\ns_add_u32 s26, s26, s25\nv_add_u32 v{248+4*k+j}, s26, v2")
    B(f"v_add_u32 v22, {HB}, v2")
    B(f"v_and_b32 v8, 15, v0\nv_lshlrev_b32 v8, 4, v8\nv_add_u32 v8, {SB}, v8\ns_lshl_b32 s25, s6, 8\nv_add_u32 v9, s25, v8\nv_add_u32 v15, {DUM}, v2")
    B("v_cmp_eq_u32 s[36:37], v10, v11\nv_cmp_eq_u32 s[38:39], 1, v12\nv_cmp_eq_u32 s[26:27], 2, v12\nv_cmp_eq_u32 s[28:29], 3, v12\ns_mov_b32 s30, 0x3ae38e39")
    B("v_cndmask_b32 v9, v15, v9, s[36:37]")
    for j in range(4):
        B(f"s_lshl_b32 s25, s{32+j}, 8\nv_add_u32 v{244+j}, s25, v8")
    P = Asm(); A_main = A.l
    loads = []
    def cap(fn, *args):
        A.l = []; fn(*args); r = A.l; A.l = A_main; return r
    for j in range(4): loads.append(cap(xdma))
    npf = 0
    def pfload(vo, vd): A(f"buffer_load_dword v{vd}, v{vo}, s[12:15], s23 offen")
    for s in range(LA):
        for c in range(9):
            if c == 8: loads.append(cap(xdma))
            loads.append(cap(wload, s, c) + (["    s_add_u32 s16, s16, 9216"] if c == 8 else []))
        if s == 0 and opt.get("pf"):
            NS = 32 if opt.get("map1") else 16
            npf = -(-2664 // (64*NS))
            pre = [f"    v_mul_u32_u24 v5, {NS*128}, v0", f"    s_lshr_b32 s23, s2, {3 if opt.get('map1') else 4}", "    s_lshl_b32 s23, s23, 7"]
            for i in range(npf):
                loads.append(pre + [f"    buffer_load_dword v{200+i}, v5, s[8:11], s23 offen", f"    s_add_u32 s23, s23, {64*NS*128}"]); pre = []
    bl = B.l; per = -(-len(bl) // (len(loads) - 8))
    for i, ld in enumerate(loads):
        A.l += ld
        if i >= 8:
            A.l += bl[:per]; bl = bl[per:]
    A.l += bl
    A(f"s_waitcnt vmcnt({len(loads)-4})\ns_barrier")
    st()
    def xread(s, sl, a):
        A(f"ds_read_b64_tr_b16 {ar(xf(s, a), 2)}, v{16+a} offset:{sl*4096}")
        A(f"ds_read_b64_tr_b16 {ar(xf(s, a)+2, 2)}, v{16+a} offset:{sl*4096+512}")
    for a in range(4): xread(0, 0, a)
    fin = [f"v_cndmask_b32 v6, v{S2}, v{S2+1}, s[38:39]", f"v_mul_f32 v7, s30, v{S1}", f"v_cndmask_b32 v6, v6, v{S2+2}, s[26:27]",
           f"v_cndmask_b32 v6, v6, v{S2+3}, s[28:29]", "v_mul_f32 v6, s30, v6", "v_fma_f32 v6, -v7, v7, v6", "v_max_f32 v6, 0, v6",
           "v_cvt_pk_bf16_f32 v6, v6, v6", "v_lshlrev_b32 v6, 16, v6", "v_add_f32 v6, 0x3727c5ac, v6", "v_cvt_pk_bf16_f32 v6, v6, v6",
           "v_lshlrev_b32 v6, 16, v6", "v_sqrt_f32 v6, v6", f"v_cvt_pk_bf16_f32 v{TMP+1}, -v7, -v7", f"v_cvt_pk_bf16_f32 v{TMP}, v6, v6",
           f"v_mov_b32 v{TMP+3}, v{TMP+1}", f"v_mov_b32 v{TMP+2}, v{TMP}", f"ds_write_b128 v9, {vr(TMP)}"]
    A("s_mov_b32 s17, 0\ns_waitcnt lgkmcnt(0)")
    A(".p2align 3\nK3_g1:")
    for s in range(6):
        fl = list(fin) if s == 5 else []
        A(f"{MF} {vr(S1)}, {ar(ONES)}, {ar(xf(s,0))}, {vr(S1)}")
        A(f"s_cmp_lt_u32 s17, {(13 - LA - s)//6 + 1}\ns_cbranch_scc0 K3_nx{s}")
        xdma()
        A(f"K3_nx{s}:")
        A(f"{MF} {vr(S2)}, {ar(xf(s,0))}, {ar(xf(s,0))}, {vr(S2)}")
        for c in range(9):
            A(f"s_waitcnt vmcnt({9*LA-1})")
            for a in range(4):
                A(f"{MF} {vr(acc(c,a))}, {ar(ring(s,c))}, {ar(xf(s,a))}, {vr(acc(c,a))}")
                if a == 0: wload(s+LA, c)
                if a == 2 and c < 4: xread(s+1, s+1, c)
                if c >= 4 and a >= 1 and fl:
                    A(fl.pop(0))
                    if a == 2 and fl: A(fl.pop(0))
        assert not fl
        A("s_add_u32 s16, s16, 9216")
        if s == 5:
            for a in range(4): A(f"v_add_u32 v{16+a}, 24576, v{16+a}")
            A("s_add_u32 s17, s17, 1\ns_cmp_lt_u32 s17, 3")
        A("s_waitcnt lgkmcnt(0)")
        if s % 3 == 2: A("s_barrier")
    A("s_cbranch_scc1 K3_g1")
    st()
    for j in range(4): A(f"ds_read_b128 {ar(xf(0, j))}, v{244+j}")
    A(f"ds_read_b64_tr_b16 v[{TMP+4}:{TMP+5}], v23\nds_read_b64_tr_b16 v[{TMP+6}:{TMP+7}], v23 offset:512")
    A(f"ds_read_b64_tr_b16 v[{TMP+8}:{TMP+9}], v23 offset:32768\nds_read_b64_tr_b16 v[{TMP+10}:{TMP+11}], v23 offset:33280")
    A(f"v_add_u32 v23, 65536, v23\nds_read_b64_tr_b16 v[{TMP+12}:{TMP+13}], v23\nds_read_b64_tr_b16 v[{TMP+14}:{TMP+15}], v23 offset:512")
    A(f"v_lshlrev_b32 v6, 16, v{TMP}\nv_rcp_f32 v6, v6\nv_and_b32 v5, 15, v0\nv_lshlrev_b32 v7, 2, v5\nv_mov_b32 v15, 0x7ffffff0")
    A("v_cndmask_b32 v7, v15, v7, s[36:37]")
    A(f"s_lshl_b32 s25, s3, 2\ns_add_u32 s25, s25, s6\ns_lshl_b32 s31, s25, 6\ns_add_u32 s31, s31, {WS_RS}")
    A("v_mul_u32_u24 v5, 1152, v5\nv_lshl_add_u32 v5, v10, 4, v5")
    A(f"s_mul_i32 s25, s25, 18432\ns_lshl_b32 s26, s7, 6\ns_add_u32 s25, s25, s26\ns_add_u32 s25, s25, {WS_X1R}")
    A("s_waitcnt lgkmcnt(6)")
    def epi(c):
        l = []
        for j in range(4):
            b = acc(c, j)
            l += [f"v_cvt_pk_bf16_f32 v{b}, v{b}, v{b+1}", f"v_cvt_pk_bf16_f32 v{b+1}, v{b+2}, v{b+3}",
                  f"v_pk_max_i16 v{b}, v{b}, 0", f"v_pk_max_i16 v{b+1}, v{b+1}, 0",
                  f"ds_write_b64 v{(248 if c % 2 == 0 else 252)+j}, v[{b}:{b+1}] offset:{(c//2)*4096}"]
        return l
    for c in range(9):
        el = epi(c-2) if c >= 2 else []
        A(f"s_waitcnt vmcnt({9*LA-1+c})")
        for a in range(4):
            A(f"{MF} {vr(acc(c,a))}, {ar(ring(18,c))}, {ar(xf(0,a))}, {vr(acc(c,a))}")
            if a in (0, 2):
                n = 2*c + a//2
                wload(18+LA + n//9, n % 9)
                if n % 9 == 8: A("s_add_u32 s16, s16, 9216")
            for x in el[5*a:5*a+5]: A(x)
    for x in epi(7) + epi(8): A(x)
    A("s_waitcnt lgkmcnt(0)\ns_barrier")
    def hread(k, kl, a):
        A(f"ds_read_b128 {ar(xf(k, a))}, v22 offset:{kl*4096 + a*1024}" if kl < 16 else f"ds_read_b128 {ar(xf(k, a))}, v21 offset:{(kl-16)*4096 + a*1024}")
    A("v_add_u32 v21, 65536, v22")
    for a in range(4): hread(0, 0, a)
    A("buffer_store_dword v6, v7, s[12:15], s31 offen")
    A(f"buffer_store_dwordx4 {vr(TMP+4)}, v5, s[12:15], s25 offen\nbuffer_store_dwordx4 {vr(TMP+8)}, v5, s[12:15], s25 offen offset:512")
    A("s_cmp_ge_u32 s7, 2\ns_cbranch_scc1 K3_x1a")
    A(f"buffer_store_dwordx4 {vr(TMP+12)}, v5, s[12:15], s25 offen offset:1024")
    A("K3_x1a:")
    A(f"s_lshl_b32 s25, s7, 5\ns_add_u32 s25, s25, s3\ns_mul_i32 s25, s25, 36\ns_add_u32 s25, s25, s24\ns_lshl_b32 s25, s25, 11\ns_add_u32 s25, s25, {WS_PART}")
    st()
    def epi2(cc):
        l = []
        for ap in range(2):
            b0 = acc(cc, 2*ap); b1 = acc(cc, 2*ap+1); T = 192 + (cc*2+ap)*4
            l += [f"v_cvt_pk_bf16_f32 v{T}, v{b0}, v{b0+1}", f"v_cvt_pk_bf16_f32 v{T+1}, v{b0+2}, v{b0+3}",
                  f"v_cvt_pk_bf16_f32 v{T+2}, v{b1}, v{b1+1}", f"v_cvt_pk_bf16_f32 v{T+3}, v{b1+2}, v{b1+3}",
                  ("; " if opt.get("nostore") else "") + f"buffer_store_dwordx4 {vr(T)}, {'v2' if cc < 2 else 'v3'}, s[12:15], s25 offen offset:{(cc%2)*2048+ap*1024}" + (" " + opt["stflag"] if opt.get("stflag") else "")]
        return l
    spread = opt.get("spread")
    stores = [x for cc in range(3) for x in epi2(cc) if "buffer_store" in x]
    if spread:
        _e = epi2
        epi2 = lambda cc: [x for x in _e(cc) if "buffer_store" not in x]
        A("s_mov_b32 s26, s25\ns_mov_b32 s25, 0x70000000")
    A("s_mov_b32 s17, 0")
    A(".p2align 3\nK3_g2:")
    for k in range(18):
        t = k // 3
        for cc in range(3):
            c = (k % 3)*3 + cc
            A(f"s_waitcnt vmcnt({9*LA2-1}) lgkmcnt(0)" if cc == 0 else f"s_waitcnt vmcnt({9*LA2-1})")
            el = epi2(0) if (k == 17 and cc == 2) else []
            for a in range(4):
                A(f"{MF} {vr(acc(cc,a))}, {ar(ring(19+t,c))}, {ar(xf(k,a))}, {vr(acc(cc,a)) if k else 0}")
                if a == 0: wload(19+t+LA2, c)
                if cc == 0 and a >= 1: hread(k+1, (k+1) % 18, a-1)
                if cc == 0 and a == 3: hread(k+1, (k+1) % 18, 3)
                if spread and k % 3 == 0 and cc == 1 and a == 2: A(stores[k//3])
                if a >= 1:
                    for x in el[[0,0,3,6][a]:[0,3,6,10][a]]: A(x)
        if k % 3 == 2: A("s_add_u32 s16, s16, 9216")
    A("s_add_u32 s17, s17, 1")
    for x in epi2(1) + epi2(2): A(x)
    if spread:
        A("s_mov_b32 s25, s26\ns_add_u32 s26, s26, 6144\ns_cmp_lt_u32 s17, 3\ns_cbranch_scc1 K3_g2")
        for x in stores: A(x)
    else:
        A("s_add_u32 s25, s25, 6144\ns_cmp_lt_u32 s17, 3\ns_cbranch_scc1 K3_g2")
    st.finish("s[12:15]", "s6", 0x200000)
    A("K3_done:")
    return kernel("k3_kernel", A.text(), 256, 256)

if __name__ == "__main__":
    import sys
    opt = {k.split("=")[0]: (k.split("=")[1] if "=" in k else 1) for k in sys.argv[2:]}
    hdr = f"; @launch kernel=k3_kernel grid=(256,1,1) block=(256,1,1) lds={K3_LDS}\n.amdgcn_target \"amdgcn-amd-amdhsa--gfx950\"\n"
    open(sys.argv[1], "w").write(hdr + gen_k3(opt))
```

```python
from common import *
K4_GRID = 576
def gen_k4(opt=None):
    opt = opt or {}
    A = Asm(); st = Stamps(A, opt.get("stamp"))
    A(f"s_cmp_ge_u32 s2, {K4_GRID}\ns_cbranch_scc1 K4_done")
    st.start()
    A(f"s_load_dwordx2 s[4:5], s[0:1], {KA['ws']}\ns_load_dwordx2 s[24:25], s[0:1], {KA['out']}")
    A("s_mul_i32 s20, s2, 7282\ns_lshr_b32 s20, s20, 16\ns_mul_i32 s21, s20, 9\ns_sub_u32 s21, s2, s21")
    A("s_lshr_b32 s22, s20, 1\ns_mul_i32 s22, s22, 73728\ns_lshl_b32 s23, s21, 13\ns_add_u32 s22, s22, s23\ns_and_b32 s23, s20, 1\ns_lshl_b32 s23, s23, 10\ns_add_u32 s22, s22, s23")
    A(f"s_add_u32 s22, s22, {WS_PART}")
    A("v_lshlrev_b32 v3, 4, v0\nv_add_u32 v4, 4096, v3\nv_and_b32 v1, 15, v0\nv_lshrrev_b32 v2, 4, v0")
    A("v_mul_u32_u24 v5, 1152, v1\nv_lshl_add_u32 v5, v2, 5, v5\nv_add_u32 v6, 18432, v5")
    A("s_mul_i32 s26, s20, 36864\ns_lshl_b32 s27, s21, 7\ns_add_u32 s26, s26, s27")
    A(f"s_add_u32 s27, s26, {WS_X1R}")
    A(f"v_lshlrev_b32 v7, 6, v2\ns_lshl_b32 s28, s21, 8\ns_add_u32 s28, s28, {WS_GB}")
    A(f"v_lshlrev_b32 v8, 2, v1\ns_lshl_b32 s29, s20, 7\ns_add_u32 s29, s29, {WS_RS}")
    A("s_waitcnt lgkmcnt(0)")
    srd(A, 12, 4, 0, WS_SIZE)
    P = 96
    for sg in range(8):
        for e in range(4):
            A(f"buffer_load_dwordx4 {vr(P+16*sg+4*e)}, {'v3' if e < 2 else 'v4'}, s[12:15], s22 offen offset:{(e % 2)*2048}" + (" " + opt["ldflag"] if opt.get("ldflag") else ""))
        A("s_add_u32 s22, s22, 2359296")
    X = 64; G = 80
    A(f"buffer_load_dwordx4 {vr(X)}, v5, s[12:15], s27 offen\nbuffer_load_dwordx4 {vr(X+4)}, v5, s[12:15], s27 offen offset:16")
    A(f"buffer_load_dwordx4 {vr(X+8)}, v6, s[12:15], s27 offen\nbuffer_load_dwordx4 {vr(X+12)}, v6, s[12:15], s27 offen offset:16")
    for k in range(4): A(f"buffer_load_dwordx4 {vr(G+4*k)}, v7, s[12:15], s28 offen offset:{16*k}")
    A("buffer_load_dword v10, v8, s[12:15], s29 offen\nbuffer_load_dword v11, v8, s[12:15], s29 offen offset:64")
    srd(A, 8, 24, 0, 2359296)
    A("v_and_b32 v12, 1, v1\nv_lshlrev_b32 v12, 4, v12\nv_mov_b32 v13, 0x3f80\nv_lshlrev_b32 v12, v12, v13")
    A("v_lshrrev_b32 v13, 1, v1\nv_lshlrev_b32 v14, 1, v2\nv_sub_u32 v13, v13, v14")
    A("v_cmp_eq_u32 vcc, 0, v13\nv_cmp_eq_u32 s[30:31], 1, v13\nv_mov_b32 v18, 0\nv_mov_b32 v19, 0\nv_mov_b32 v20, 0\nv_mov_b32 v21, 0")
    A("v_cndmask_b32 v16, 0, v12, vcc\nv_cndmask_b32 v17, 0, v12, s[30:31]\nv_cndmask_b32 v22, 0, v12, vcc\nv_cndmask_b32 v23, 0, v12, s[30:31]")
    AC = 32
    for sg in range(8):
        for e in range(4):
            A(f"s_waitcnt vmcnt({41 - 4*sg - e})")
            for hh in range(2):
                a = AC + hh*16 + e*4
                A(f"v_mfma_f32_16x16x32_bf16 {vr(a)}, {vr(16+4*hh)}, {vr(P+16*sg+4*e)}, {vr(a) if sg else 0}")
    st()
    A("s_waitcnt vmcnt(0)\ns_nop 6")
    for hh in range(2):
        for r in range(4):
            for e in (0, 2):
                a0 = AC + hh*16 + e*4 + r; a1 = a0 + 4; dd = 4*r + e; xw = X + hh*8 + dd//2
                A(f"v_mul_f32 v24, v{10+hh}, v{a0}\nv_mul_f32 v25, v{10+hh}, v{a1}\nv_cvt_pk_bf16_f32 v25, v24, v25\nv_lshlrev_b32 v24, 16, v25\nv_and_b32 v25, 0xffff0000, v25")
                A(f"v_mul_f32 v24, v{G+dd}, v24\nv_mul_f32 v25, v{G+dd+1}, v25\nv_cvt_pk_bf16_f32 v25, v24, v25\nv_lshlrev_b32 v24, 16, v25\nv_and_b32 v25, 0xffff0000, v25")
                A(f"v_lshlrev_b32 v26, 16, v{xw}\nv_and_b32 v27, 0xffff0000, v{xw}\nv_add_f32 v24, v24, v26\nv_add_f32 v25, v25, v27\nv_cvt_pk_bf16_f32 v{xw}, v24, v25")
            if r % 2 == 1:
                A(f"buffer_store_dwordx4 {vr(X+hh*8+4*(r//2))}, v{5+hh}, s[8:11], s26 offen offset:{16*(r//2)}")
    if opt.get("stamp"): A("s_mov_b32 s6, 0")
    st.finish("s[12:15]", "s6", 0x300000)
    A("K4_done:")
    return kernel("k4_kernel", A.text(), 224)
```

```python
import sys
from common import *
import k1, k2, k3, k4
def build(opt):
    ref = open("adaLN_cond__ssm_conv_s4d__dense_activation_relu__prompt.s.ref").read().split("\n")
    hdr = [l for l in ref if l.startswith(";") and "@launch" not in l and "Override" not in l and "grid=ceil" not in l]
    hdr += [f"; @launch kernel=k1_kernel grid=({k1.K1_GRID},1,1) block=(256,1,1) lds={k1.K1_LDS}",
            f"; @launch kernel=k2_kernel grid=({k2.K2_GRID},1,1) block=(256,1,1) lds={k2.K2_LDS}",
            f"; @launch kernel=k3_kernel grid=(256,1,1) block=(256,1,1) lds={k3.K3_LDS}",
            f"; @launch kernel=k4_kernel grid=({k4.K4_GRID},1,1) block=(64,1,1) lds=0"]
    return "\n".join(hdr) + "\n.amdgcn_target \"amdgcn-amd-amdhsa--gfx950\"\n" + k1.gen_k1(opt) + k2.gen_k2(opt) + k3.gen_k3(opt) + k4.gen_k4(opt)
if __name__ == "__main__":
    opt = {k.split("=")[0]: (k.split("=")[1] if "=" in k else 1) for k in sys.argv[2:]}
    open(sys.argv[1], "w").write(build(opt))
```

```python
L, D, NST, F = 2048, 576, 128, 4608
KA = dict(u=0, lar=8, aim=16, cre=24, cim=32, ldt=40, dsk=48, bx=56, w1=64, w2=72, c=80, wmod=88, out=96, dbg=104, ws=112)
WS_NX   = 0x0000000
WS_KT   = 0x0480000
WS_MODP = 0x06E0000
WS_GB   = 0x0700000
WS_RS   = 0x0701000
WS_X1T  = 0x0740000
WS_X1R  = 0x0980000
WS_W    = 0x0BC0000
WS_PART = 0x1640000
WS_STAMP = 0x3000000
WS_SIZE = 0x10000000
NFR = 333
KTP = 4224

class Asm:
    def __init__(self):
        self.l = []
    def __call__(self, s):
        for x in s.split("\n"):
            x = x.strip()
            if x: self.l.append(("" if x.endswith(":") else "    ") + x)
    def text(self): return "\n".join(self.l) + "\n"

def kernel(name, body, vgpr, agpr=0, sgpr=102):
    acc = (vgpr + 3) // 4 * 4
    nfv = acc + agpr if agpr else vgpr
    return f""".text
.globl {name}
.p2align 8
.type {name},@function
{name}:
{body}    s_endpgm
.section .rodata,"a"
.p2align 6
.amdhsa_kernel {name}
  .amdhsa_next_free_vgpr {nfv}
  .amdhsa_next_free_sgpr {sgpr}
  .amdhsa_accum_offset {acc}
  .amdhsa_group_segment_fixed_size 0
  .amdhsa_kernarg_size 120
  .amdhsa_user_sgpr_count 2
  .amdhsa_user_sgpr_kernarg_segment_ptr 1
  .amdhsa_system_sgpr_workgroup_id_x 1
  .amdhsa_float_denorm_mode_32 3
.end_amdhsa_kernel
"""
def vr(b, n=4): return f"v[{b}:{b+n-1}]"
def ar(b, n=4): return f"a[{b}:{b+n-1}]"
def sr(b, n=4): return f"s[{b}:{b+n-1}]"
def srd(A, d, base_lo, off, size):
    A(f"s_add_u32 s{d}, s{base_lo}, {off}\ns_addc_u32 s{d+1}, s{base_lo+1}, 0\ns_mov_b32 s{d+2}, {size}\ns_mov_b32 s{d+3}, 0x20000")
def round_bf16(A, v, t):
    A(f"v_cvt_pk_bf16_f32 v{v}, v{v}, v{v}\nv_lshlrev_b32 v{v}, 16, v{v}")

class Stamps:
    def __init__(self, A, on, base=64):
        self.A, self.on, self.n, self.base = A, on, 0, base
    def start(self): self()
    def __call__(self):
        if self.on:
            b = self.base + 4*self.n
            self.A(f"s_memtime s[{b}:{b+1}]\ns_memrealtime s[{b+2}:{b+3}]"); self.n += 1
            assert self.n <= 8
    def finish(self, srd, swave, koff=0):
        if not self.on: return
        A = self.A; b = self.base; t = b + 32
        self(); A("s_waitcnt vmcnt(0)"); self()
        A("s_waitcnt lgkmcnt(0)")
        A(f"s_lshl_b32 s{t}, s2, 2\ns_add_u32 s{t}, s{t}, {swave}\ns_lshl_b32 s{t}, s{t}, 7\ns_add_u32 s{t}, s{t}, {WS_STAMP+koff}\nv_mov_b32 v1, 0\ns_mov_b64 exec, 1")
        for i in range(self.n):
            A(f"v_mov_b32 v2, s{b+4*i}\nbuffer_store_dword v2, v1, {srd}, s{t} offen offset:{4*i}")
            A(f"v_mov_b32 v2, s{b+4*i+2}\nbuffer_store_dword v2, v1, {srd}, s{t} offen offset:{32+4*i}")
        A(f"v_mov_b32 v2, {self.n}\nbuffer_store_dword v2, v1, {srd}, s{t} offen offset:64")
WS_TAG  = 0x0000000
WS_ST   = 0x0001000
WS_MODG = 0x0010000
def poll(A, name, loads, tags, cnt="s60", extra=None):
    A(f"s_mov_b32 {cnt}, 0\n{name}:")
    for x in loads: A(x)
    A(f"s_add_u32 {cnt}, {cnt}, 1\ns_waitcnt vmcnt(0)")
    for t in tags: A(f"v_cmpx_eq_u32 vcc, s7, v{t}")
    A(f"s_nop 4\ns_cmp_eq_u64 exec, -1\ns_mov_b64 exec, -1\ns_cbranch_scc1 {name}_ok\ns_sleep 1\ns_cmp_lt_u32 {cnt}, 0x8000\ns_cbranch_scc1 {name}\n{name}_ok:")
WS_XT   = 0x0100000
```

```python
from common import *
from k1 import cmul, XROWS, LOG2E, INV2PI, TPITCH
NSV, NCV = 108, 144
KA_GRID = NSV + NCV
CP = 4160
TREG, AB, XO, AREG = 17408, 69632, 4608, 8704
KA_LDS = AB + 4*AREG
OOB = 0x70000000
def arrive(A):
    A(f"v_mov_b32 v254, {OOB}\nv_cmp_eq_u32 vcc, 0, v253\nv_mov_b32 v255, 1\ns_nop 0\nv_cndmask_b32 v254, v254, v253, vcc\nbuffer_atomic_add v255, v254, s[44:47], 0 offen sc0")

def gen_conv(A, st, opt):
    A(f"s_sub_u32 s48, s2, {NSV}\ns_and_b32 s49, s48, 7\ns_mul_i32 s49, s49, 18\ns_lshr_b32 s48, s48, 3\ns_add_u32 s48, s48, s49")
    A("s_lshl_b32 s49, s48, 2\ns_add_u32 s49, s49, s6")
    A("s_lshl_b32 s50, s49, 8\nv_lshl_add_u32 v1, v0, 2, s50\ns_lshl_b32 s50, s49, 1\nv_mov_b32 v2, s50")
    A(f"s_sub_u32 s50, s2, {NSV}\ns_mul_i32 s50, s50, 3\ns_add_u32 s50, s50, s6\ns_and_b32 s51, s50, 7\ns_lshr_b32 s50, s50, 3\ns_cmp_lt_u32 s6, 3\ns_cselect_b32 s52, 0, {OOB}")
    A("v_and_b32 v250, 15, v0\nv_lshrrev_b32 v248, 4, v0\nv_mul_u32_u24 v248, 18432, v248\nv_lshl_add_u32 v248, v250, 3, v248\nv_add_u32 v248, s52, v248\nv_lshl_add_u32 v252, v0, 4, s52")
    for m in range(1, 4): A(f"v_add_u32 v{248+m}, {4608*m}, v248")
    A("s_waitcnt lgkmcnt(0)")
    A("global_load_dword v3, v1, s[18:19]\nglobal_load_dword v4, v1, s[20:21]\nglobal_load_dword v6, v1, s[22:23]\nglobal_load_dword v7, v1, s[24:25]\nglobal_load_ushort v5, v2, s[26:27]\nglobal_load_ushort v194, v2, s[28:29]")
    srd(A, 8, 16, 0, 2359296)
    A(f"s_sub_u32 s61, s2, {NSV}\ns_lshr_b32 s61, s61, 3\ns_lshl_b32 s62, s6, 1\ns_add_u32 s61, s61, s62\ns_add_u32 s62, s61, 1\ns_and_b32 s61, s61, 7\ns_and_b32 s62, s62, 7")
    A("s_lshl_b32 s63, s48, 3\ns_mul_i32 s19, s61, 294912\ns_mul_i32 s20, s62, 294912\ns_add_u32 s19, s19, s63\ns_add_u32 s20, s20, s63\nv_mul_u32_u24 v195, 4608, v0")
    ug = [f"buffer_load_dwordx2 a[{96+8*i+2*k}:{97+8*i+2*k}], v195, s[8:11], s{19+i} offen offset:{1152*k}" for i in range(2) for k in range(4)]
    NG0 = int(opt.get("ng0", 4))
    for x in ug[:NG0]: A(x)
    ug = ug[NG0:]
    srd(A, 52, 34, 0, 4608*1152)
    A(f"s_load_dword s7, s[42:43], {WS_TAG}")
    A("s_mul_i32 s23, s50, 57\ns_lshr_b32 s23, s23, 9\ns_mul_i32 s26, s23, 9\ns_sub_u32 s22, s50, s26")
    A("s_mul_i32 s26, s51, 36\ns_mul_i32 s27, s23, 6\ns_add_u32 s26, s26, s27\ns_lshl_b32 s28, s22, 7")
    for u in range(3):
        A(f"s_add_u32 s27, s26, {2*u}\ns_lshr_b32 s29, s27, 2\ns_lshl_b32 s29, s29, 6\ns_and_b32 s27, s27, 3\ns_add_u32 s27, s27, s29\ns_mul_i32 s27, s27, 1152\ns_add_u32 s{16+u}, s27, s28")
    gath = [f"buffer_load_dwordx2 v[{200+u*16+2*j}:{201+u*16+2*j}], v{248 + j % 4}, s[52:55], s{16+u} offen offset:{(j//4)*1152}" for u in range(3) for j in range(8)]
    for e in range(4):
        A(f"s_lshl_b32 s27, s22, 2\ns_add_u32 s27, s27, {e}\ns_mul_i32 s29, s27, 57\ns_lshr_b32 s29, s29, 9\ns_mul_i32 s30, s29, 9\ns_sub_u32 s27, s27, s30")
        A(f"s_lshl_b32 s30, s51, 2\ns_add_u32 s30, s30, s29\ns_mul_i32 s30, s30, {NFR}")
        opt["w2pos"](A)
        A(f"s_lshl_b32 s30, s30, 10\ns_add_u32 s{56+e}, s30, {WS_W}")
    srd(A, 12, 42, 0, WS_SIZE); srd(A, 44, 40, 0, 256)
    A(f"s_mul_i32 s34, s6, {TREG}\ns_mov_b32 m0, s34\ns_mul_i32 s33, s6, {AREG}\ns_add_u32 s33, s33, {AB}")
    A(f"v_and_b32 v9, 31, v0\nv_mul_u32_u24 v9, {TPITCH}, v9\nv_lshrrev_b32 v10, 5, v0\nv_lshl_add_u32 v9, v10, 4, v9\nv_add_u32 v9, s34, v9")
    A(f"s_mov_b32 s35, {LOG2E}\ns_mov_b32 s36, {INV2PI}")
    A(f"v_mov_b32 v112, 0\nv_mov_b32 v113, 0\nv_lshl_add_u32 v11, v0, 3, s33\nds_write_b64 v11, v[112:113]")
    A(f"s_waitcnt vmcnt({NG0})")
    st()
    for r, h in ((3, 190), (4, 191), (6, 192), (7, 193)): A(f"v_and_b32 v{h}, 0xffff0000, v{r}\nv_lshlrev_b32 v{r}, 16, v{r}")
    A("v_lshlrev_b32 v5, 16, v5\nv_mul_f32 v3, s35, v3\nv_mul_f32 v190, s35, v190\nv_mul_f32 v5, s35, v5\nv_exp_f32 v3, v3\nv_exp_f32 v190, v190\nv_exp_f32 v5, v5")
    A("v_max_f32 v11, abs(v6), abs(v7)\nv_max3_f32 v11, abs(v192), abs(v193), v11")
    round_bf16(A, 3, 0); round_bf16(A, 190, 0); round_bf16(A, 5, 0)
    for r in (3, 190): A(f"v_mul_f32 v{r}, v{r}, v5\nv_mul_f32 v{r+1}, v{r+1}, v5\nv_mul_f32 v{r}, s35, v{r}\nv_mul_f32 v{r+1}, s36, v{r+1}")
    for sh in (8, 4, 2, 1): A(f"s_nop 1\nv_max_f32_dpp v11, v11, v11 row_ror:{sh} row_mask:0xf bank_mask:0xf")
    A("s_nop 0\nv_readlane_b32 s37, v11, 0\nv_readlane_b32 s38, v11, 16\nv_readlane_b32 s39, v11, 32\nv_readlane_b32 s21, v11, 48")
    A("s_max_u32 s37, s37, s38\ns_max_u32 s39, s39, s21\ns_max_u32 s37, s37, s39")
    A("v_frexp_exp_i32_f32 v11, s37\nv_sub_u32 v20, 0, v11")
    for r in (6, 7, 192, 193): A(f"v_ldexp_f32 v{r}, v{r}, v20")
    A("v_add_f32 v5, v5, v5\nv_ldexp_f32 v5, v5, v11")
    def mf(s, z): return f"v_mfma_f32_32x32x16_f16 v[112:127], {vr(128+8*s)}, {vr(132+8*s) if s < 7 else vr(196)}, {0 if z else 'v[112:127]'}"
    for P0, C0, fill in ((3, 6, []), (190, 192, [("s_waitcnt lgkmcnt(6)\n" if s == 0 else "") + mf(s, s == 0) for s in range(8)])):
        ex = ((12, 1.0), (14, 8.0), (16, 256.0), (18, 16.0))
        for k, (dst, p) in enumerate(ex): A(f"v_mul_f32 v{20+2*k}, {p!r}, v{P0}\nv_mul_f32 v{21+2*k}, {p!r}, v{P0+1}")
        for k, (dst, p) in enumerate(ex): A(f"v_exp_f32 v{20+2*k}, -v{20+2*k}\nv_fract_f32 v{21+2*k}, v{21+2*k}")
        for k, (dst, p) in enumerate(ex): A(f"v_cos_f32 v{dst}, v{21+2*k}\nv_sin_f32 v{dst+1}, v{21+2*k}")
        for k, (dst, p) in enumerate(ex): A(f"v_mul_f32 v{dst}, v{20+2*k}, v{dst}\nv_mul_f32 v{dst+1}, v{20+2*k}, v{dst+1}")
        cmul(A, 22, 12, 12); cmul(A, 24, 22, 22)
        E = {1: 12, 2: 22, 4: 24, 8: 14, 256: 16}
        xreg = {}
        plan = [(0, None, None)] + [(p, p-1, 1) for p in range(1, 8)]
        plan += [(256, 0, 256), (512, 256, 256), (768, 512, 256), (1024, 768, 256), (1280, 1024, 256), (1536, 1280, 256), (1792, 1536, 256)]
        plan += [(258, 256, 2), (260, 256, 4), (262, 258, 4), (264, 256, 8), (516, 512, 4), (520, 512, 8), (772, 768, 4), (776, 768, 8)]
        plan += [(1032, 1024, 8), (1288, 1280, 8), (1544, 1536, 8), (1800, 1792, 8)]
        order = [plan[0]]
        for a, b in zip(plan[1:8], plan[8:15]): order += [a, b]
        order += plan[15:]
        xl = []; nx = 30
        for (p, src, e) in order:
            X = Asm()
            if src is None: xreg[p] = C0
            else:
                xreg[p] = nx; nx += 2; cmul(X, xreg[p], xreg[src], E[e])
            t = 100 + len(xl) % 4
            X(f"v_cvt_pk_f16_f32 v{t}, v{xreg[p]}, -v{xreg[p]+1}")
            for i, q in enumerate(XROWS):
                if q == p or (q is None and p == 0): X(f"ds_write_addtid_b32 v{t} offset:{i*TPITCH}")
            xl.append(X.l)
        yl = []
        A("v_mov_b32 v90, 1.0\nv_mov_b32 v91, 0\nv_mov_b32 v94, v14\nv_mov_b32 v95, v15")
        for q in range(32):
            Y = Asm()
            base = 90 + 4*(q % 2); cur = base + 2*((q//2) % 2); prev = base + 2*(((q//2)+1) % 2)
            if q >= 2: cmul(Y, cur, prev, 18)
            t = 104 + q % 4
            Y(f"v_cvt_pk_f16_f32 v{t}, v{cur}, v{cur+1}\nds_write_addtid_b32 v{t} offset:{(32+q)*TPITCH}")
            yl.append(Y.l)
        for i in range(32):
            a = yl[i]; b = xl[i] if i < len(xl) else []
            for k in range(max(len(a), len(b))):
                if k < len(a): A.l.append(a[k])
                if k < len(b): A.l.append(b[k])
            if i % 4 == 1 and fill: A(fill.pop(0))
            if P0 == 3 and i % 8 == 7 and ug: A(ug.pop(0))
            if P0 != 3 and i % 4 != 1 and gath: A(gath.pop(0))
        for s in range(8):
            A(f"ds_read_b128 {vr(128+8*s)}, v9 offset:{32*s}\nds_read_b128 {vr(132+8*s)}, v9 offset:{32*TPITCH+32*s}" if s < 7 else
              f"ds_read_b128 {vr(184)}, v9 offset:{32*s}\nds_read_b128 {vr(196)}, v9 offset:{32*TPITCH+32*s}")
    for s in range(8): A(f"s_waitcnt lgkmcnt({14-2*s})\n" + mf(s, 0))
    st()
    A("s_mov_b32 s38, 0x05040100\ns_mov_b32 s39, 0x07060302")
    for i in range(2): A(f"s_lshl_b32 s53, s{61+i}, 9\ns_add_u32 s53, s53, {AB}\nv_lshl_add_u32 v{12+i}, v0, 3, s53")
    A("s_waitcnt vmcnt(24)")
    for k in range(16): A(f"v_accvgpr_read_b32 v{96+k}, a{96+k}")
    for i in range(2):
        for ch in range(4):
            b = 96 + 8*i + ch//2; T = 80 + 8*i + 2*ch
            A(f"v_perm_b32 v{T}, v{b+2}, v{b}, s{38+ch%2}\nv_perm_b32 v{T+1}, v{b+6}, v{b+4}, s{38+ch%2}")
            A(f"ds_write_b64 v{12+i}, v[{T}:{T+1}] offset:{ch*AREG + XO}")
    for i in range(0, 16, 2): A(f"v_pk_mul_f32 v[{112+i}:{113+i}], v[{112+i}:{113+i}], v[4:5] op_sel:[0,1] op_sel_hi:[1,1]")
    A("v_and_b32 v15, 31, v0\nv_lshlrev_b32 v15, 4, v15\nv_lshl_add_u32 v15, v10, 3, v15\nv_sub_u32 v15, 504, v15\nv_add_u32 v15, s34, v15")
    A("v_cmp_eq_u32 vcc, 1, v10\nv_and_b32 v16, 33, v0\nv_cmp_eq_u32 s[54:55], 32, v16")
    def stb(B, r): A(f"ds_write_b64 v15, v[{r}:{r+1}] offset:{(7-B)*512}")
    A("v_cvt_pk_bf16_f32 v20, v115, v114\nv_cvt_pk_bf16_f32 v21, v113, v112"); stb(0, 20)
    A("v_cvt_pk_bf16_f32 v22, v118, v117\nv_cvt_pk_bf16_f32 v23, v116, v116"); stb(1, 22)
    for B, r in ((2, 120), (3, 122)):
        t = 24 + 2*(B-2)
        A(f"v_cndmask_b32 v30, v{r}, v{r+1}, vcc\nv_cvt_pk_bf16_f32 v{t}, v{r+1}, v30\nv_cvt_pk_bf16_f32 v{t+1}, v{r}, v{r}"); stb(B, t)
    for k in range(4): A(f"v_mov_b32 v{32+k}, v{124+k}\nv_mov_b32 v{36+k}, v{124+k}")
    A("s_nop 1")
    for k in range(4): A(f"v_permlane32_swap_b32 v{32+k}, v{36+k}")
    for k in range(4):
        t = 40 + 2*k
        A(f"v_cndmask_b32 v30, v{124+k}, v{32+k}, s[54:55]\nv_cvt_pk_bf16_f32 v{t}, v{124+k}, v{124+k}\nv_cvt_pk_bf16_f32 v{t+1}, v{124+k}, v30"); stb(4+k, t)
    A(f"v_and_b32 v1, 15, v0\nv_lshrrev_b32 v2, 4, v0\nv_mul_u32_u24 v16, {CP}, v2\nv_lshl_add_u32 v16, v1, 2, v16\nv_add_u32 v16, s34, v16\nv_mov_b32 v17, 0\nds_write_b32 v16, v17 offset:4096")
    A("v_lshl_add_u32 v16, v0, 4, s34")
    for j in range(4): A(f"ds_read_b128 {vr(128+8*j)}, v16 offset:{1024*j}\nds_read_b64 v[{132+8*j}:{133+8*j}], v16 offset:{1024*j+16}")
    for j in range(4):
        d = 128 + 8*j; T = 160 + 12*(j % 2)
        A(f"s_waitcnt lgkmcnt({6-2*j+3*j})")
        for k in range(4): A(f"v_alignbit_b32 v{T+k}, v{d+k+1}, v{d+k}, 16")
        A(f"ds_write_b128 v16, {vr(T)} offset:{CP+1024*j}")
        for k in range(4): A(f"v_mov_b32 v{T+4+k}, v{d+k+1}")
        A(f"ds_write_b128 v16, {vr(T+4)} offset:{2*CP+1024*j}")
        for k in range(4): A(f"v_alignbit_b32 v{T+8+k}, v{d+k+2}, v{d+k+1}, 16")
        A(f"ds_write_b128 v16, {vr(T+8)} offset:{3*CP+1024*j}")
    A("v_lshlrev_b32 v3, 5, v0\nv_and_b32 v4, 7, v0\nv_mul_u32_u24 v4, 27648, v4\nv_bfe_u32 v5, v0, 3, 2\nv_lshl_add_u32 v4, v5, 3, v4\nv_mul_u32_u24 v5, 4608, v10\nv_add_u32 v5, v5, v4")
    A(f"s_lshl_b32 s61, s61, 11\ns_add_u32 s61, s61, {WS_ST}\ns_lshl_b32 s62, s62, 11\ns_add_u32 s62, s62, {WS_ST}\ns_lshl_b32 s51, s48, 5\ns_add_u32 s51, s51, {WS_MODG}\ns_add_u32 s52, s51, 9216\ns_add_u32 s7, s7, 1")
    A(f"v_lshlrev_b32 v11, 5, v1\nv_lshl_add_u32 v14, v2, 4, v11\nv_add_u32 v14, s33, v14\nv_lshl_add_u32 v11, v2, 3, v11\nv_add_u32 v11, s33, v11")
    A(f"v_sub_u32 v15, 15, v1\nv_and_b32 v16, 3, v15\nv_mul_u32_u24 v16, {CP-2}, v16\nv_lshl_add_u32 v16, v15, 1, v16\nv_lshl_add_u32 v16, v2, 4, v16\nv_add_u32 v16, s34, v16")
    A("s_bfe_u32 s54, s49, 0x10001\ns_bfe_u32 s55, s49, 0x10003\ns_lshl_b32 s55, s55, 1\ns_or_b32 s54, s54, s55")
    A("v_lshrrev_b32 v20, 2, v1\nv_and_b32 v21, 1, v2\nv_lshl_add_u32 v20, v21, 2, v20\nv_mul_u32_u24 v20, 73728, v20\nv_and_b32 v21, 3, v1\nv_xor_b32 v21, s54, v21\nv_lshl_add_u32 v20, v21, 5, v20\nv_lshl_add_u32 v20, v10, 4, v20")
    A(f"s_lshl_b32 s29, s49, 7\ns_add_u32 s29, s29, {WS_X1T}\ns_lshl_b32 s53, s6, 3\nv_lshlrev_b32 v194, 16, v194")
    Y = 32; FB = [0, 64]; NXR = 64; HF = 96
    def freads(r):
        b = FB[r % 2]; l = []
        for q in range(8):
            o = 512*(7-q) + 64*(7-r)
            l += [f"ds_read_b64 a[{b+4*q}:{b+4*q+1}], v16 offset:{o}", f"ds_read_b64 a[{b+4*q+2}:{b+4*q+3}], v16 offset:{o+8}"]
        return l
    for x in freads(0): A(x)
    for k in range(16): A(f"v_lshlrev_b32 v{32+2*k}, 16, v{96+k}\nv_and_b32 v{33+2*k}, 0xffff0000, v{96+k}")
    st()
    ld = [f"buffer_load_dwordx2 v[144:145], v5, s[12:15], s51 offen sc1", f"buffer_load_dwordx2 v[146:147], v4, s[12:15], s52 offen sc1"]
    ld += [f"buffer_load_dwordx4 {vr(128+4*k)}, v3, s[12:15], s{61+k//2} offen offset:{(k%2)*16} sc1" for k in range(4)]
    poll(A, "KC_poll", ld, range(129, 148, 2))
    st()
    for k in range(8): A(f"v_and_b32 v{148+k}, 0xffff0000, v{128+2*k}\nv_lshlrev_b32 v{156+k}, 16, v{128+2*k}")
    for n, sh in enumerate((4, 2, 1)):
        A(f"v_add_f32_dpp v144, v144, v144 row_shl:{sh} row_mask:0xf bank_mask:0xf\nv_add_f32_dpp v146, v146, v146 row_shl:{sh} row_mask:0xf bank_mask:0xf")
        for k in range(3*n, min(3*n+3, 8)): A(f"v_rcp_f32 v{148+k}, v{148+k}")
    A("v_cvt_pk_bf16_f32 v144, v144, v146\nv_and_b32 v146, 0xffff0000, v144\nv_lshlrev_b32 v144, 16, v144\nv_add_f32 v145, 1.0, v144")
    round_bf16(A, 145, 0)
    for k in range(8): A(f"v_mul_f32 v{156+k}, -v{156+k}, v{148+k}")
    for ch in range(4): A(f"v_readlane_b32 s{16+ch}, v145, {32+8*ch}\nv_readlane_b32 s{20+ch}, v144, {8*ch}")
    A("v_readlane_b32 s34, v146, s53\nv_readfirstlane_b32 s36, v194")
    for ch in range(4): A(f"v_mov_b32 v{24+ch}, s{20+ch}")
    for i in range(2):
        for k in range(4):
            x = 32 + 16*i + 4*k; p = 96 + 8*i + 2*k; rr = 148 + 4*i + (k & 2); o = k & 1
            for c in (0, 2): A(f"v_pk_fma_f32 v[{x+c}:{x+c+1}], v[{x+c}:{x+c+1}], v[{rr}:{rr+1}], v[{rr+8}:{rr+9}] op_sel:[0,{o},{o}] op_sel_hi:[1,{o},{o}]")
            for c in (0, 2): A(f"v_pk_fma_f32 v[{x+c}:{x+c+1}], v[{x+c}:{x+c+1}], s[{16+c}:{17+c}], v[{24+c}:{25+c}]")
        for ch in range(4):
            x = 32 + 16*i + ch; T = 64 + 8*i + 2*ch
            A(f"v_cvt_pk_bf16_f32 v{T}, v{x}, v{x+4}\nv_cvt_pk_bf16_f32 v{T+1}, v{x+8}, v{x+12}")
            A(f"ds_write_b64 v{12+i}, v[{T}:{T+1}] offset:{ch*AREG + 512}")
    def greads(r): return [f"ds_read_b128 {ar(FB[r % 2]+32+4*u)}, v14 offset:{32 + 512*u + 64*(7-r)}" for u in range(8)]
    A("s_mov_b32 s35, s34\ns_waitcnt lgkmcnt(0)\ns_barrier")
    for x in greads(0): A(x)
    A(f"v_mov_b32 v30, {OOB}\nv_cmp_eq_u32 vcc, 0, v253\nv_mov_b32 v31, 1\ns_nop 0\nv_cndmask_b32 v30, v30, v253, vcc\nbuffer_atomic_add v31, v30, s[44:47], 0 offen sc0")
    st()
    ep = []
    for t in range(8): ep += [f"ds_read_b64 v[{NXR+4*t}:{NXR+4*t+1}], v11 offset:{512+512*t}", f"ds_read_b64 v[{NXR+4*t+2}:{NXR+4*t+3}], v11 offset:{XO+512*t}"]
    sk = []; w2 = []
    for u in range(3):
        for e in range(4):
            T = 128 + (u*4+e)*4
            w2 += [f"v_perm_b32 v{T+k}, v{200+u*16+4*k+e//2+2}, v{200+u*16+4*k+e//2}, s{38 + e % 2}" for k in range(4)]
            w2 += [f"buffer_store_dwordx4 {vr(T)}, v252, s[12:15], s{56+e} offen sc1\ns_add_u32 s{56+e}, s{56+e}, s24"]
    for t in range(8):
        n = NXR + 4*t; h = HF + 4*t
        un = [f"v_lshlrev_b32 v{h}, 16, v{n}", f"v_and_b32 v{h+1}, 0xffff0000, v{n}", f"v_lshlrev_b32 v{h+2}, 16, v{n+1}", f"v_and_b32 v{h+3}, 0xffff0000, v{n+1}"]
        sk += un + [f"v_mul_f32 v{h+k}, s36, v{h+k}" for k in range(4)] + [f"v_cvt_pk_bf16_f32 v{n}, v{h}, v{h+1}", f"v_cvt_pk_bf16_f32 v{n+1}, v{h+2}, v{h+3}"] + un
    for r in range(8):
        nxt = greads(r+1) + freads(r+1) if r < 7 else []
        if r < 2: nxt += ep[8*r:8*r+8]
        b = FB[r % 2]
        A("s_waitcnt lgkmcnt(0)")
        for q in range(8):
            for u in range(8-q):
                t = q + u
                A(f"v_mfma_f32_16x16x32_bf16 {vr(Y+4*t)}, {ar(b+4*q)}, {ar(b+32+4*u)}, {vr(Y+4*t) if (r or q) else 0}")
                n = 2
                if nxt: A(nxt.pop(0)); n = 1
                for _ in range(n):
                    if w2 and _ == 0 and (8*q+u) % 3 == 0: A(w2.pop(0))
                    elif sk and r >= 2: A(sk.pop(0))
    assert not w2
    for x in sk: A(x)
    st()
    def unp(d, s): A(f"v_lshlrev_b32 v{d}, 16, v{s}\nv_and_b32 v{d+1}, 0xffff0000, v{s}\nv_lshlrev_b32 v{d+2}, 16, v{s+1}\nv_and_b32 v{d+3}, 0xffff0000, v{s+1}")
    def rnd(y, T):
        A(f"v_cvt_pk_bf16_f32 v{T}, v{y}, v{y+1}\nv_cvt_pk_bf16_f32 v{T+1}, v{y+2}, v{y+3}"); unp(y, T)
    for t in range(8):
        y = Y + 4*t; h = HF + 4*t; n = NXR + 4*t; T = 176 + 2*t
        rnd(y, T)
        A(f"v_pk_add_f32 v[{y}:{y+1}], v[{y}:{y+1}], v[{h}:{h+1}]\nv_pk_add_f32 v[{y+2}:{y+3}], v[{y+2}:{y+3}], v[{h+2}:{h+3}]")
        rnd(y, T)
        A(f"v_pk_mul_f32 v[{y}:{y+1}], v[{y}:{y+1}], s[34:35]\nv_pk_mul_f32 v[{y+2}:{y+3}], v[{y+2}:{y+3}], s[34:35]")
        rnd(y, T); unp(h, n+2)
        A(f"v_pk_add_f32 v[{y}:{y+1}], v[{y}:{y+1}], v[{h}:{h+1}]\nv_pk_add_f32 v[{y+2}:{y+3}], v[{y+2}:{y+3}], v[{h+2}:{h+3}]")
        A(f"v_cvt_pk_bf16_f32 v{T}, v{y}, v{y+1}\nv_cvt_pk_bf16_f32 v{T+1}, v{y+2}, v{y+3}")
        if t % 2:
            A(f"s_nop 1\nv_permlane16_swap_b32 v{T-2}, v{T}\nv_permlane16_swap_b32 v{T-1}, v{T+1}")
            A(f"buffer_store_dwordx4 {vr(T-2)}, v20, s[12:15], s29 offen sc1\ns_add_u32 s29, s29, {8*73728}")
    A("s_waitcnt vmcnt(16)\ns_branch KA_end")

def gen_svc(A, st, opt):
    W1P = opt["w1pos"]
    A("s_lshl_b32 s48, s2, 2\ns_add_u32 s48, s48, s6\ns_and_b32 s49, s48, 7\ns_lshr_b32 s50, s48, 3")
    A("v_lshrrev_b32 v1, 3, v0\nv_and_b32 v2, 7, v0\nv_mul_u32_u24 v3, 6912, v1\nv_lshl_add_u32 v3, v2, 4, v3")
    A("s_mul_i32 s51, s49, 497664\ns_lshl_b32 s52, s50, 7\ns_add_u32 s51, s51, s52")
    A("s_mul_i32 s52, s49, 144\nv_lshl_add_u32 v4, v1, 1, s52")
    A(f"s_mul_i32 s53, s6, 108\ns_add_u32 s53, s53, s2\ns_mul_i32 s54, s53, 9216\ns_lshl_b32 s55, s53, 6\ns_add_u32 s55, s55, {WS_ST}\ns_cmp_lt_u32 s53, 256\ns_cselect_b32 s55, s55, {OOB}")
    A("v_mul_u32_u24 v5, 1152, v1\nv_lshl_add_u32 v5, v2, 4, v5\nv_add_u32 v5, s54, v5\nv_lshl_add_u32 v6, v1, 3, s55")
    A("s_waitcnt lgkmcnt(0)")
    srd(A, 8, 38, 0, 576*6912); srd(A, 20, 16, 0, 2359296)
    A(f"s_load_dword s7, s[42:43], {WS_TAG}")
    for it in range(9): A(f"buffer_load_dwordx4 {vr(96+4*it)}, v5, s[20:23], 0 offen offset:{128*it}")
    for it in range(9): A(f"global_load_ushort v{10+it}, v4, s[36:37] offset:{16*it}")
    for it in range(9): A(f"buffer_load_dwordx4 {vr(32+4*it)}, v3, s[8:11], s51 offen\ns_add_u32 s51, s51, 55296")
    A("v_and_b32 v240, 15, v0\nv_lshrrev_b32 v241, 4, v0")
    srd(A, 12, 42, 0, WS_SIZE); srd(A, 44, 40, 0, 256)
    A("s_mov_b32 s30, 0x3f803f80")
    for it in range(9):
        A(f"s_waitcnt vmcnt({26-it})")
        if it == 0: st()
        for k in range(4):
            w = 96 + 4*it + k; z = it or k > 1
            A(f"v_dot2_f32_bf16 v{84+k%2}, v{w}, s30, {'v%d' % (84+k%2) if z else 0}\nv_dot2_f32_bf16 v{86+k%2}, v{w}, v{w}, {'v%d' % (86+k%2) if z else 0}")
    A("s_mov_b32 s30, 0x3ae38e39\ns_nop 1\nv_add_f32 v84, v84, v85\nv_add_f32 v86, v86, v87")
    for m in ("quad_perm:[1,0,3,2]", "quad_perm:[2,3,0,1]", "row_half_mirror"):
        A(f"s_nop 0\nv_add_f32_dpp v84, v84, v84 {m} row_mask:0xf bank_mask:0xf\nv_add_f32_dpp v86, v86, v86 {m} row_mask:0xf bank_mask:0xf")
    A("v_mul_f32 v84, s30, v84\nv_mul_f32 v86, s30, v86\nv_fma_f32 v86, -v84, v84, v86\nv_max_f32 v86, 0, v86")
    round_bf16(A, 86, 0); A("v_add_f32 v86, 0x3727c5ac, v86"); round_bf16(A, 86, 0)
    A("v_sqrt_f32 v86, v86\ns_waitcnt lgkmcnt(0)\ns_add_u32 s7, s7, 1\nv_mov_b32 v89, s7\nv_cvt_pk_bf16_f32 v88, v84, v86\nbuffer_store_dwordx2 v[88:89], v6, s[12:15], 0 offen sc1")
    A(f"s_mov_b32 s25, {LOG2E}\ns_waitcnt vmcnt(10)")
    def each(f):
        for it in range(9): A(f(it))
    each(lambda i: f"v_lshlrev_b32 v{10+i}, 16, v{10+i}")
    each(lambda i: f"v_mul_f32 v{20+i}, s25, v{10+i}")
    each(lambda i: f"v_exp_f32 v{20+i}, -v{20+i}")
    each(lambda i: f"v_add_f32 v{20+i}, 1.0, v{20+i}")
    each(lambda i: f"v_rcp_f32 v{20+i}, v{20+i}")
    each(lambda i: f"v_mul_f32 v{10+i}, v{10+i}, v{20+i}")
    each(lambda i: f"v_cvt_pk_bf16_f32 v{10+i}, v{10+i}, v{10+i}")
    each(lambda i: f"v_and_b32 v{20+i}, 0xffff0000, v{10+i}\nv_and_b32 v{10+i}, 0xffff, v{10+i}")
    for it in range(9):
        A(f"s_waitcnt vmcnt({9-it})")
        for k in range(4):
            w = 32 + 4*it + k
            A(f"v_dot2_f32_bf16 v{80+2*k}, v{w}, v{10+it}, {'v%d' % (80+2*k) if it else 0}\nv_dot2_f32_bf16 v{81+2*k}, v{w}, v{20+it}, {'v%d' % (81+2*k) if it else 0}")
    A("s_nop 2")
    for k in range(4): A(f"v_permlane32_swap_b32 v{80+k}, v{84+k}")
    for k in range(4): A(f"v_add_f32 v{80+k}, v{80+k}, v{84+k}")
    A("s_nop 1")
    for k in range(2): A(f"v_permlane16_swap_b32 v{80+k}, v{82+k}")
    A("v_add_f32 v80, v80, v82\nv_add_f32 v82, v81, v83")
    A("v_lshlrev_b32 v7, 4, v241\nv_lshl_add_u32 v7, v2, 6, v7\nv_mov_b32 v81, s7\nv_mov_b32 v83, s7")
    for k in (0, 2): A(f"v_add_f32_dpp v{80+k}, v{80+k}, v{80+k} row_ror:8 row_mask:0xf bank_mask:0xf")
    A(f"s_mul_i32 s51, s49, 27648\ns_lshl_b32 s52, s50, 9\ns_add_u32 s51, s51, s52\ns_add_u32 s51, s51, {WS_MODG}")
    A("buffer_store_dwordx4 v[80:83], v7, s[12:15], s51 offen sc1")
    st()
    A("s_mul_i32 s21, s2, 43\ns_lshr_b32 s21, s21, 8\ns_mul_i32 s22, s21, 6\ns_sub_u32 s20, s2, s22\ns_lshl_b32 s22, s21, 2\ns_add_u32 s22, s22, s6")
    A("v_mul_u32_u24 v3, 73728, v241\nv_lshl_add_u32 v3, v240, 3, v3")
    A("s_mul_i32 s23, s20, 884736\ns_lshl_b32 s26, s22, 7\ns_add_u32 s23, s23, s26")
    srd(A, 8, 32, 0, 576*9216)
    for u in range(3):
        for j in range(8):
            r = 32 + u*16 + 2*j
            A(f"buffer_load_dwordx2 v[{r}:{r+1}], v3, s[8:11], s23 offen\ns_add_u32 s23, s23, {9216 if j < 7 else 9216*25}")
    A("v_lshlrev_b32 v7, 4, v0")
    A("v_cmp_le_u32 vcc, 96, v253\nv_mov_b32 v5, 3840\nv_lshlrev_b32 v4, 3, v253\nv_cndmask_b32 v5, 0, v5, vcc\nv_add_u32 v4, v4, v5")
    A(f"s_mul_i32 s27, s20, 768\ns_add_u32 s28, s27, {WS_MODG + 3*4608}\ns_min_u32 s27, s2, 8\ns_lshl_b32 s27, s27, 9\ns_add_u32 s29, s27, {WS_MODG + 5*4608 - 3840 - 1536}")
    A("s_cmp_eq_u32 s6, 3\ns_cselect_b32 s28, s29, s28")
    for k in range(1, 4): A(f"v_add_u32 v{244+k}, {2*27648*k}, v4")
    A("s_add_u32 s29, s28, 27648")
    for e in range(4):
        A(f"s_lshl_b32 s27, s22, 2\ns_add_u32 s27, s27, {e}\ns_mul_i32 s30, s27, 7282\ns_lshr_b32 s30, s30, 16\ns_mul_i32 s31, s30, 9\ns_sub_u32 s27, s27, s31\ns_mul_i32 s30, s30, {NFR}")
        W1P(A)
        A(f"s_lshl_b32 s30, s30, 10\ns_add_u32 s{56+e}, s30, {WS_W}\ns_lshl_b32 s31, s31, 10\ns_add_u32 s{52+e}, s31, {WS_W}")
    A("v_lshlrev_b32 v6, 3, v253\nv_mov_b32 v5, 0xfffffd00\nv_cndmask_b32 v5, 4, v5, vcc\nv_add_u32 v6, v6, v5\nv_lshlrev_b32 v28, 6, v241")
    A("v_mov_b32 v248, 0x3f803f80\nv_mov_b32 v249, v248\nv_mov_b32 v250, v248\nv_mov_b32 v251, v248\ns_mov_b64 s[38:39], vcc")
    st()
    poll(A, "KS_poll", [f"buffer_load_dwordx2 v[{8+2*k}:{9+2*k}], v{[4,245,246,247][k//2]}, s[12:15], s{28+k%2} offen sc1" for k in range(8)], range(9, 24, 2))
    A("v_add_f32 v8, v8, v10\nv_add_f32 v12, v12, v14\nv_add_f32 v16, v16, v18\nv_add_f32 v20, v20, v22\nv_add_f32 v8, v8, v12\nv_add_f32 v16, v16, v20\nv_add_f32 v8, v8, v16")
    round_bf16(A, 8, 0)
    A("v_add_f32 v9, 1.0, v8"); round_bf16(A, 9, 0)
    A("v_cndmask_b32 v9, v8, v9, s[38:39]\nds_write_b32 v6, v9")
    A(f"s_min_u32 s27, s2, 8\ns_lshl_b32 s27, s27, 8\ns_add_u32 s27, s27, {WS_GB}\ns_cmp_eq_u32 s6, 3\ns_cselect_b32 s27, s27, {OOB}\ns_cmp_lt_u32 s2, 9\ns_cselect_b32 s27, s27, {OOB}\nv_lshl_add_u32 v10, v0, 2, s27\nbuffer_store_dword v8, v10, s[12:15], 0 offen")
    A("s_waitcnt lgkmcnt(0)\ns_barrier")
    A(f"v_mov_b32 v30, {OOB}\nv_cmp_eq_u32 vcc, 0, v253\nv_mov_b32 v31, 1\ns_nop 0\nv_cndmask_b32 v30, v30, v253, vcc\nbuffer_atomic_add v31, v30, s[44:47], 0 offen sc0")
    st()
    TB = 80; UP = 128; BI = 24; CS = 160; FO = 176
    for u in range(3):
        for k in range(4): A(f"ds_read_b128 {vr(TB+16*u+4*k)}, v28 offset:{256*u+16*k}")
    for u in range(3):
        A(f"s_waitcnt lgkmcnt({8-4*u})")
        for j in range(8):
            r = 32 + u*16 + 2*j; d = UP + 4*j; tb = TB + 16*u + 2*j
            A(f"v_lshlrev_b32 v{d}, 16, v{r}\nv_and_b32 v{d+1}, 0xffff0000, v{r}\nv_lshlrev_b32 v{d+2}, 16, v{r+1}\nv_and_b32 v{d+3}, 0xffff0000, v{r+1}")
            for k in (0, 2):
                if u == 0 and j == 0: A(f"v_pk_mul_f32 v[{BI+k}:{BI+k+1}], v[{d+k}:{d+k+1}], v[{tb}:{tb+1}] op_sel:[0,1] op_sel_hi:[1,1]")
                else: A(f"v_pk_fma_f32 v[{BI+k}:{BI+k+1}], v[{d+k}:{d+k+1}], v[{tb}:{tb+1}], v[{BI+k}:{BI+k+1}] op_sel:[0,1,0] op_sel_hi:[1,1,1]")
            for k in (0, 2):
                A(f"v_pk_mul_f32 v[{d+k}:{d+k+1}], v[{d+k}:{d+k+1}], v[{tb}:{tb+1}] op_sel:[0,0] op_sel_hi:[1,0]")
        for e in range(4):
            T = FO + (u*4+e)*4
            for k in range(4): A(f"v_cvt_pk_bf16_f32 v{T+k}, v{UP+8*k+e}, v{UP+8*k+4+e}")
            A(f"buffer_store_dwordx4 {vr(T)}, v7, s[12:15], s{56+e} offen sc1\ns_add_u32 s{56+e}, s{56+e}, s24")
            A(f"v_mfma_f32_16x16x32_bf16 {vr(CS+4*e)}, v[248:251], {vr(T)}, {vr(CS+4*e) if u else 0}")
    for k in range(4): A(f"v_mov_b32 v{8+k}, v{BI+k}")
    A("s_nop 1")
    for k in range(4): A(f"v_permlane32_swap_b32 v{BI+k}, v{8+k}")
    for k in range(4): A(f"v_add_f32 v{BI+k}, v{BI+k}, v{8+k}")
    for k in range(4): A(f"v_mov_b32 v{8+k}, v{BI+k}")
    A("s_nop 1")
    for k in range(4): A(f"v_permlane16_swap_b32 v{BI+k}, v{8+k}")
    for k in range(4): A(f"v_add_f32 v{BI+k}, v{BI+k}, v{8+k}")
    A("s_lshr_b32 s29, s20, 1\ns_lshl_b32 s29, s29, 8\ns_and_b32 s30, s20, 1\ns_lshl_b32 s30, s30, 3\ns_add_u32 s29, s29, s30\ns_add_u32 s30, s30, 768")
    A(f"s_cmp_lt_u32 s20, 2\ns_cselect_b32 s30, s30, {OOB}")
    A(f"v_cmp_eq_u32 vcc, 0, v241\nv_cmp_eq_u32 s[32:33], 1, v241\nv_mov_b32 v12, {OOB}\nv_mov_b32 v13, s29\nv_mov_b32 v14, s30")
    A("v_cndmask_b32 v12, v12, v13, vcc\nv_cndmask_b32 v12, v12, v14, s[32:33]\nv_lshl_add_u32 v12, v240, 4, v12")
    for e in range(4):
        b = BI + e; c = CS + 4*e; T = 32 + 2*e
        A(f"v_cvt_pk_bf16_f32 v8, v{b}, v{c}\nv_lshlrev_b32 v9, 16, v8\nv_and_b32 v10, 0xffff0000, v8\nv_sub_f32 v15, v{b}, v9\nv_sub_f32 v11, v{c}, v10")
        A(f"v_cvt_pk_bf16_f32 v{T}, v9, v15\nv_cvt_pk_bf16_f32 v{T+1}, v10, v11\nv_cndmask_b32 v{T}, 0, v{T}, vcc\nv_cndmask_b32 v{T+1}, 0, v{T+1}, vcc")
        A(f"buffer_store_dwordx2 v[{T}:{T+1}], v12, s[12:15], s{52+e} offen")
    st(); st()
    A("s_waitcnt vmcnt(16)")

def gen_ka(opt):
    A = Asm(); st = Stamps(A, opt.get("stamp"))
    A(f"s_cmp_ge_u32 s2, {KA_GRID}\ns_cbranch_scc1 KA_done")
    st.start()
    A("s_load_dwordx16 s[16:31], s[0:1], 0\ns_load_dwordx8 s[32:39], s[0:1], 64\ns_load_dwordx4 s[40:43], s[0:1], 104")
    A("v_mov_b32 v253, v0\nv_lshrrev_b32 v1, 6, v0\nv_and_b32 v0, 63, v0\ns_nop 0\nv_readfirstlane_b32 s6, v1")
    A(f"s_cmp_lt_u32 s2, {NSV}\ns_cbranch_scc1 KA_svc")
    n0 = st.n
    gen_conv(A, st, opt); nmax = st.n
    A("KA_svc:"); st.n = n0
    gen_svc(A, st, opt)
    assert st.n == nmax
    A("KA_end:")
    A(f"v_cmp_eq_u32 vcc, {KA_GRID-1}, v31\nv_mov_b32 v29, {OOB}\nv_mov_b32 v28, s7\nv_cndmask_b32 v30, v29, v30, vcc\nbuffer_store_dword v28, v30, s[12:15], 0 offen offset:{WS_TAG}")
    if st.on: st.n -= 1
    st.finish("s[12:15]", "s6", 0)
    A("KA_done:")
    return kernel("ka_kernel", A.text(), 256, 128)
```

```python
import sys
from common import *
import ka, k3, k4
def build(opt):
    ref = open("adaLN_cond__ssm_conv_s4d__dense_activation_relu__prompt.s.ref").read().split("\n")
    hdr = [l for l in ref if l.startswith(";") and "@launch" not in l and "Override" not in l and "grid=ceil" not in l]
    hdr += [f"; @launch kernel=ka_kernel grid=({ka.KA_GRID},1,1) block=(256,1,1) lds={ka.KA_LDS}",
            f"; @launch kernel=k3_kernel grid=(256,1,1) block=(256,1,1) lds={k3.K3_LDS}",
            f"; @launch kernel=k4_kernel grid=({k4.K4_GRID},1,1) block=(64,1,1) lds=0"]
    opt["w2pos"] = lambda A: A("s_mul_i32 s29, s27, 86\ns_lshr_b32 s29, s29, 8\ns_mul_i32 s31, s29, 51\ns_add_u32 s30, s30, s31\ns_add_u32 s30, s30, s27\ns_mul_i32 s31, s23, 9\ns_add_u32 s30, s30, s31\ns_add_u32 s30, s30, 171\ns_mov_b32 s24, 3072")
    opt["w1pos"] = lambda A: A("s_add_u32 s30, s30, s27\ns_add_u32 s31, s30, 162\ns_mul_i32 s24, s20, 27\ns_add_u32 s30, s30, s24\ns_mov_b32 s24, 9216")
    pk = ""
    if opt.get("probe"):
        off, base = {"bx": (56, 0), "ws": (112, 0x100000), "wsend": (112, 0xF000000), "w1": (64, 0), "none": (64, 0)}[opt["probe"]]
        hdr.insert(len(hdr)-3, "; @launch kernel=pr_kernel grid=(1,1,1) block=(64,1,1) lds=0")
        A = Asm(); A(f"s_cmp_ge_u32 s2, 1\ns_cbranch_scc1 PR_d\ns_load_dwordx2 s[4:5], s[0:1], {off}\nv_mov_b32 v1, {base}\ns_waitcnt lgkmcnt(0)")
        for i in range(0 if opt["probe"] == "none" else 40): A("global_load_dword v2, v1, s[4:5]\ns_waitcnt vmcnt(0)\nv_add_u32 v1, 33024, v1")
        A("PR_d:"); pk = kernel("pr_kernel", A.text(), 8)
    return "\n".join(hdr) + "\n.amdgcn_target \"amdgcn-amd-amdhsa--gfx950\"\n" + pk + ka.gen_ka(opt) + k3.gen_k3(opt) + k4.gen_k4(opt)
if __name__ == "__main__":
    opt = {k.split("=")[0]: (k.split("=")[1] if "=" in k else 1) for k in sys.argv[2:]}
    open(sys.argv[1], "w").write(build(opt))
```
